```python
import torch

def _softmax(x, axis=-1):
    return torch.softmax(x, dim=axis)

def _gelu(x):
    return torch.nn.functional.gelu(x, approximate='tanh')

def _silu(x):
    return torch.nn.functional.silu(x)

def _sigmoid(x):
    return torch.sigmoid(x)

def _layernorm(x, axis=-1, eps=1e-05):
    m = x.mean(dim=axis, keepdim=True)
    v = x.var(dim=axis, keepdim=True, unbiased=False)
    return (x - m) / torch.sqrt(v + eps)

def _scatter_add(tgt, idx, src, axis=0):
    return tgt.clone().index_add_(axis, idx, src)

def _segment_sum(src, seg, n):
    out = torch.zeros((n,) + src.shape[1:], dtype=src.dtype)
    return out.index_add_(0, seg, src)

def _pad(x, pw):
    flat = tuple((v for pair in reversed(pw) for v in pair))
    return torch.nn.functional.pad(x, flat)
kernel_name = 'standalone__conformer_family_zipformer__speech'

def setup_inputs():

    _w = lambda a: (lambda t: t.to(torch.bfloat16) if t.is_floating_point() else t)(torch.as_tensor(a))
    B, T, D, K, H = (2, 1000, 256, 31, 4)
    sc = 0.1
    return {'x': _w((lambda *s: torch.randn(*s, dtype=torch.bfloat16) * 0.8)(B, T, D)), 'w_ff1a': _w((lambda *s: torch.randn(*s, dtype=torch.bfloat16) * 0.8)(D, 4 * D) * sc), 'w_ff1b': _w((lambda *s: torch.randn(*s, dtype=torch.bfloat16) * 0.8)(4 * D, D) * sc), 'w_qkv': _w((lambda *s: torch.randn(*s, dtype=torch.bfloat16) * 0.8)(D, 3 * D) * sc), 'w_o': _w((lambda *s: torch.randn(*s, dtype=torch.bfloat16) * 1.6)(D, D) * sc), 'w_pw1': _w((lambda *s: torch.randn(*s, dtype=torch.bfloat16) * 1.6)(D, 2 * D) * sc), 'dw': _w((lambda *s: torch.randn(*s, dtype=torch.bfloat16) * 0.4)(K, D)), 'w_pw2': _w((lambda *s: torch.randn(*s, dtype=torch.bfloat16) * 0.4)(D, D) * sc), 'w_ff2a': _w((lambda *s: torch.randn(*s, dtype=torch.bfloat16) * 0.8)(D, 4 * D) * sc), 'w_ff2b': _w((lambda *s: torch.randn(*s, dtype=torch.bfloat16) * 0.8)(4 * D, D) * sc)}

def reference(x, w_ff1a, w_ff1b, w_qkv, w_o, w_pw1, dw, w_pw2, w_ff2a, w_ff2b):
    B, T, D = x.shape
    K = dw.shape[0]
    H = 4
    Dh = D // H
    h = _layernorm(x, axis=-1)
    h = _silu(h @ w_ff1a) @ w_ff1b
    x = x + 0.5 * h
    h = _layernorm(x, axis=-1)
    qkv = h @ w_qkv
    q = (lambda x, *d: x.permute(*d))(qkv[..., :D].reshape(B, T, H, Dh), 0, 2, 1, 3)
    k = (lambda x, *d: x.permute(*d))(qkv[..., D:2 * D].reshape(B, T, H, Dh), 0, 2, 1, 3)
    v = (lambda x, *d: x.permute(*d))(qkv[..., 2 * D:].reshape(B, T, H, Dh), 0, 2, 1, 3)
    scale = Dh ** (-0.5)
    scores = torch.einsum('bhqd,bhkd->bhqk', q, k) * scale
    p = _softmax(scores, axis=-1)
    att = torch.einsum('bhqk,bhkd->bhqd', p, v)
    att = (lambda x, *d: x.permute(*d))(att, 0, 2, 1, 3).reshape(B, T, D)
    x = x + att @ w_o
    h = _layernorm(x, axis=-1)
    h = h @ w_pw1
    a, b = (h[..., :D].clone(), h[..., D:].clone())
    h = a * _sigmoid(b)
    pad = K // 2
    hp = _pad(h, ((0, 0), (pad, pad), (0, 0)))
    c = torch.zeros_like(h)
    for i in range(K):
        c = c + hp[:, i:i + T, :] * dw[i][None, None, :]
    x = x + _silu(c) @ w_pw2
    h = _layernorm(x, axis=-1)
    h = _silu(h @ w_ff2a) @ w_ff2b
    x = x + 0.5 * h
    return _layernorm(x, axis=-1)
```

```python
import re
TRANS = ("v_exp_f32","v_log_f32","v_rcp_f32","v_rsq_f32","v_sqrt_f32","v_sin_f32","v_cos_f32")
def vregs(op):
    op = op.strip()
    m = re.match(r"^-?(?:abs\()?v\[(\d+):(\d+)\]", op)
    if m: return list(range(int(m.group(1)), int(m.group(2))+1))
    m = re.match(r"^-?(?:abs\()?v(\d+)\b", op)
    if m: return [int(m.group(1))]
    return []
def sregs(op):
    op = op.strip()
    m = re.match(r"^s\[(\d+):(\d+)\]", op)
    if m: return list(range(int(m.group(1)), int(m.group(2))+1))
    m = re.match(r"^s(\d+)\b", op)
    if m: return [int(m.group(1))]
    if op.startswith("vcc"): return ["vcc"]
    return []
class Emit:
    def __init__(s):
        s.L=[]; s.t=0
        s.valu={}; s.trans={}; s.mfma={}; s.mfc={}; s.wst={}; s.dot={}; s.vs={}; s.m0=-99
        s.vm=[]
        s.cond=0
        s.nlab=0
    def raw(s,x): s.L.append(x)
    def label(s,name):
        s.L.append(name+":")
    def newlab(s,p="L"):
        s.nlab+=1; return f"{p}_{s.nlab}"
    def nop(s,n):
        while n>0:
            k=min(n,16); s.L.append(f"    s_nop {k-1}"); s.t+=k; n-=k
    def I(s,txt,tag=None):
        mn,_,rest = txt.partition(" ")
        ops=[o.strip() for o in re.split(r",(?![^\[]*\])", rest)] if rest else []
        need=0
        def req(d,regs,ws):
            nonlocal need
            for r in regs:
                if r in d: need=max(need, ws-(s.t-d[r]-1))
        isv=mn.startswith("v_"); ismf=mn.startswith("v_mfma"); isds=mn.startswith("ds_")
        isbuf=mn.startswith("buffer_") or mn.startswith("global_")
        dst=[];src=[];sd=[];ss=[]
        if isv:
            if mn.startswith("v_cmp"):
                sd=sregs(ops[0]); src=sum((vregs(o) for o in ops[1:]),[]); ss=sum((sregs(o) for o in ops[1:]),[])
            elif mn in("v_readfirstlane_b32","v_readlane_b32"):
                sd=sregs(ops[0]); src=vregs(ops[1]); req(s.valu,src,1)
            else:
                dst=vregs(ops[0]); src=sum((vregs(o) for o in ops[1:]),[]); ss=sum((sregs(o) for o in ops[1:]),[])
                if mn.startswith("v_permlane"):
                    src=dst+src; dst=list(src); req(s.valu,src,2)
                if mn.startswith("v_dot2c") or mn.startswith("v_fmac"): src=src+dst
            req(s.vs,ss,2)
            if ismf:
                a=vregs(ops[1])+vregs(ops[2]); c=vregs(ops[3])
                req(s.valu,a+c,2); req(s.mfma,a,12); req(s.dot,a+c,3)
                if c!=dst: req(s.mfma,c,10);
                if c!=dst: req(s.mfma,dst,12)
            else:
                req(s.mfma,src+dst,12); req(s.mfc,dst,7); req(s.wst,dst,2)
                if mn not in TRANS: req(s.trans,src,1)
                else: req(s.trans,src,1)
                if mn.startswith("v_dot"):
                    req(s.dot,[r for r in src if r not in dst],3)
                else: req(s.dot,src+dst,3)
        elif isds:
            if mn.startswith("ds_read"):
                dst=vregs(ops[0]); src=vregs(ops[1])
            else:
                src=sum((vregs(o) for o in ops),[])
            req(s.mfma,src+dst,12); req(s.dot,src+dst,3); req(s.wst,dst,1)
        elif isbuf:
            lds=" lds" in txt
            if "load" in mn and not lds:
                dst=vregs(ops[0]); src=vregs(ops[1])
            else:
                src=sum((vregs(o) for o in ops[:2]),[])
            ss=sum((sregs(o.split()[0]) for o in ops if o),[])
            req(s.vs,ss,5); req(s.mfma,src+dst,12); req(s.dot,src+dst,3); req(s.wst,dst,1)
            if lds: need=max(need,1-(s.t-s.m0-1))
        else:
            ss=sum((sregs(o) for o in ops),[]); req(s.vs,ss,2)
            if mn.startswith("s_cbranch_vcc"): req(s.vs,["vcc"],2)
        if need>0: s.nop(need)
        s.L.append("    "+txt)
        t=s.t
        if isv:
            for r in sd: s.vs[r]=t
            if ismf:
                for r in dst: s.mfma[r]=t
                for r in vregs(ops[3]): s.mfc[r]=t
            else:
                for r in dst:
                    s.valu[r]=t
                    if mn in TRANS: s.trans[r]=t
                    if mn.startswith("v_dot"): s.dot[r]=t
        if isbuf:
            if "store" in mn and ("x4" in mn or "x3" in mn):
                for r in vregs(ops[0]): s.wst[r]=t
            s.vm.append((tag, s.cond))
        if mn.startswith("s_") and ops and ops[0]=="m0": s.m0=t
        if mn=="s_nop": s.t+=int(ops[0])+1
        else: s.t+=1
    def wait_vm(s,tag):
        idx=[i for i,(g,c) in enumerate(s.vm) if g==tag]
        if not idx: return
        n=sum(1 for g,c in s.vm[idx[-1]+1:] if not c)
        s.I(f"s_waitcnt vmcnt({min(n,63)})")
        if not s.cond: s.vm=s.vm[idx[-1]+1:]
    def wait_vm0(s):
        s.I("s_waitcnt vmcnt(0)")
        if not s.cond: s.vm=[]
    def settle(s):
        s.nop(12)
    def mark(s): return s.t
    def join(s,name,tb):
        sk=s.t-tb
        for d in (s.valu,s.trans,s.mfma,s.mfc,s.wst,s.dot,s.vs):
            for k in d:
                if d[k]<tb: d[k]+=sk
        if s.m0<tb: s.m0+=sk
        s.label(name)
```

```python
import sys
from emit import Emit
DBG = int(sys.argv[2]) if len(sys.argv)>2 else 0
E=Emit(); I=E.I
KN="standalone__conformer_family_zipformer__speech_kernel"
SA=0; SB=65536; ACT=131072; AUX=147456; STATS=AUX; QF=AUX+4096; MST=AUX+8192; HIM=ACT
E1=0; KV=0x400000; E3=0x600000; E4=0x700000; E6=0x800000; DUMP=0x1000000; TS=0x3000000
pX,pW1a,pW1b,pQKV,pWO,pPW1,pDW,pPW2,pW2a,pW2b,pOUT,pDBG,pWS=[8+2*i for i in range(13)]
sX,sO,sWS,sW,sD=36,40,44,48,52
sS,sTile,sB,sR,sWv=56,57,58,59,60
sT0,sT1,sT2,sT3,sCnt=61,62,63,3,4
sC=6
sWG=5
sTS=64
def srd(n): return f"s[{n}:{n+3}]"
vTID,vLANE,vL16,vTRA,vTRB,vDMA,vC16,vACTW,vACTR,vSTW,vSTR,vXOFF,vT0,vT1,vT2,vT3=range(16)
X=16; ACC=32; T=48; G=64
def v(n,k=1): return f"v{n}" if k==1 else f"v[{n}:{n+k-1}]"
nts=[0]
def stamp():
    if DBG&1:
        I("s_memrealtime s[100:101]"); I("s_waitcnt lgkmcnt(0)"); I(f"s_mov_b32 s{sTS+nts[0]}, s100"); nts[0]+=1
ndump=[0]
def dump(reg,n=16):
    if DBG&2:
        i=ndump[0]; ndump[0]+=1
        I(f"s_lshl_b32 s{sT0}, s{sWG}, 15"); I(f"s_lshl_b32 s{sT1}, s{sWv}, 12"); I(f"s_add_u32 s{sT0}, s{sT0}, s{sT1}")
        I(f"s_add_u32 s{sT0}, s{sT0}, {DUMP+i*(1<<23)}")
        for q in range(n//4):
            I(f"buffer_store_dwordx4 {v(reg+4*q,4)}, v{vL16}, {srd(sWS)}, s{sT0} offen offset:{q*1024}")
        E.wait_vm0()
def setW(p,nbytes):
    I(f"s_mov_b32 s{sW}, s{p}"); I(f"s_mov_b32 s{sW+1}, s{p+1}"); I(f"s_mov_b32 s{sW+2}, {nbytes}")
def bar(lgkm=True):
    if lgkm: I("s_waitcnt lgkmcnt(0)")
    I("s_barrier")

def dma(slot,p,nbytes,stride,row0,col0,colstep,tag,kind="n",rowS=0,colS=0):
    setW(p,nbytes)
    I(f"v_lshrrev_b32 v{vT0}, 3, v{vLANE}")
    I(f"s_movk_i32 s{sT0}, {stride}")
    I(f"v_mad_u32_u24 v{vDMA}, v{vT0}, s{sT0}, v{vC16}")
    if kind=="p":
        I(f"s_lshr_b32 s{sT1}, s{sWv}, 2")
        I(f"s_and_b32 s{sT2}, s{sWv}, 3")
        I(f"s_lshl_b32 s{sT3}, s{sT1}, 5")
        I(f"v_xor_b32 v{vDMA}, s{sT3}, v{vDMA}")
    else:
        I(f"s_lshr_b32 s{sT1}, s{sWv}, 1")
        I(f"s_and_b32 s{sT2}, s{sWv}, 1")
    I(f"s_mul_i32 s{sT1}, s{sT1}, {colstep}")
    I(f"s_mul_i32 s{sT2}, s{sT2}, {64*stride}")
    I(f"s_add_u32 s{sT1}, s{sT1}, s{sT2}")
    I(f"s_mul_i32 s{sT2}, s{sS}, {rowS*stride+colS}")
    I(f"s_add_u32 s{sT1}, s{sT1}, s{sT2}")
    I(f"s_add_u32 s{sT1}, s{sT1}, {row0*stride+col0}")
    I(f"s_lshl_b32 s{sT2}, s{sWv}, 13")
    I(f"s_add_u32 m0, s{sT2}, {slot}")
    if kind=="q":
        lab=E.newlab(); I(f"s_cmp_ge_u32 s{sWv}, 6"); I(f"s_cbranch_scc1 {lab}"); tb=E.mark(); E.cond+=1
    for i in range(8):
        I(f"buffer_load_dwordx4 v{vDMA}, {srd(sW)}, s{sT1} offen lds",tag)
        if i<7:
            I(f"s_add_u32 s{sT1}, s{sT1}, {8*stride}"); I("s_add_u32 m0, m0, 0x400")
    if kind=="q":
        E.cond-=1; E.join(lab,tb)

def gemm(ks0,nks,tra,troff,baddr,boff,first,swap=False,acc=ACC,ring=G,depth=5):
    def rd(i):
        r=ring+8*(i%(depth+1)); ks=ks0+i
        I(f"ds_read_b128 {v(r+4,4)}, v{baddr(ks)} offset:{boff+ks*1024}")
        I(f"ds_read_b64_tr_b16 {v(r,2)}, v{tra} offset:{troff+i*2048}")
        I(f"ds_read_b64_tr_b16 {v(r+2,2)}, v{tra} offset:{troff+i*2048+1024}")
    for i in range(min(depth,nks)): rd(i)
    for i in range(nks):
        out=min(nks,i+depth)-(i+1)
        I(f"s_waitcnt lgkmcnt({3*out})")
        r=ring+8*(i%(depth+1))
        a,b=(v(r,4),v(r+4,4)) if not swap else (v(r+4,4),v(r,4))
        c="0" if (first and i==0) else v(acc,16)
        I(f"v_mfma_f32_32x32x16_bf16 {v(acc,16)}, {a}, {b}, {c}")
        if i+depth<nks: rd(i+depth)
actr=lambda ks: vACTR

def pack16(src,dst):
    for i in range(8): I(f"v_cvt_pk_bf16_f32 v{dst+i}, v{src+2*i}, v{src+2*i+1}")

def ln_stats(after_bar=None):
    I(f"v_pk_mul_f32 {v(T,2)}, {v(X,2)}, {v(X,2)}")
    I(f"v_pk_add_f32 {v(T+2,2)}, {v(X,2)}, {v(X+2,2)}")
    for i in range(1,8): I(f"v_pk_fma_f32 {v(T,2)}, {v(X+2*i,2)}, {v(X+2*i,2)}, {v(T,2)}")
    for i in range(2,8): I(f"v_pk_add_f32 {v(T+2,2)}, {v(T+2,2)}, {v(X+2*i,2)}")
    I(f"v_add_f32 v{vT1}, v{T}, v{T+1}")
    I(f"v_add_f32 v{vT0}, v{T+2}, v{T+3}")
    I(f"v_permlane32_swap_b32 v{vT0}, v{vT1}")
    I(f"v_add_f32 v{vT0}, v{vT0}, v{vT1}")
    I(f"ds_write_b32 v{vSTW}, v{vT0}")
    bar()
    for i in range(4): I(f"ds_read2st64_b32 {v(T+2*i,2)}, v{vSTR} offset0:{2*i} offset1:{2*i+1}")
    if after_bar: after_bar()
    I("s_waitcnt lgkmcnt(0)")
    I(f"v_pk_add_f32 {v(T,2)}, {v(T,2)}, {v(T+2,2)}")
    I(f"v_pk_add_f32 {v(T+4,2)}, {v(T+4,2)}, {v(T+6,2)}")
    I(f"v_pk_add_f32 {v(T,2)}, {v(T,2)}, {v(T+4,2)}")
    I(f"v_add_f32 v{vT0}, v{T}, v{T+1}")
    I(f"v_mul_f32 v{vT0}, 0x3b800000, v{vT0}")
    I(f"v_mov_b32 v{vT1}, v{vT0}")
    I(f"v_permlane32_swap_b32 v{vT0}, v{vT1}")
    I(f"v_fma_f32 v{vT1}, -v{vT0}, v{vT0}, v{vT1}")
    I(f"v_max_f32 v{vT1}, 0, v{vT1}")
    I(f"v_add_f32 v{vT1}, 0x3727c5ac, v{vT1}")
    I(f"v_rsq_f32 v{vT2}, v{vT1}")
    I(f"v_mul_f32 v{vT3}, -v{vT0}, v{vT2}" if False else f"v_mul_f32_e64 v{vT3}, -v{vT0}, v{vT2}")
def ln_apply(dst):
    for i in range(8):
        I(f"v_pk_fma_f32 {v(dst+2*i,2)}, {v(X+2*i,2)}, {v(vT2,2)}, {v(vT2,2)} op_sel:[0,0,1] op_sel_hi:[1,0,1]")
def ln_to_act(after_bar=None):
    ln_stats(after_bar); ln_apply(T); pack16(T,T)
    I(f"ds_write_b128 v{vACTW}, {v(T,4)}"); I(f"ds_write_b128 v{vACTW}, {v(T+4,4)} offset:1024")

def silu(src,n,tmp):
    for i in range(0,n,2): I(f"v_pk_mul_f32 {v(tmp+i,2)}, {v(src+i,2)}, s[{sC}:{sC+1}]")
    for i in range(n): I(f"v_exp_f32 v{tmp+i}, v{tmp+i}")
    for i in range(0,n,2): I(f"v_pk_add_f32 {v(tmp+i,2)}, {v(tmp+i,2)}, 1.0 op_sel_hi:[1,0]")
    for i in range(n): I(f"v_rcp_f32 v{tmp+i}, v{tmp+i}")
    for i in range(0,n,2): I(f"v_pk_mul_f32 {v(src+i,2)}, {v(src+i,2)}, {v(tmp+i,2)}")
def setC(val):
    I(f"s_mov_b32 s{sC}, {val}"); I(f"s_mov_b32 s{sC+1}, {val}")
NLOG2E="0xbfb8aa3b"

def poll(loads,regs,valid_flags=False):
    top=E.newlab("P"); done=E.newlab("D")
    I(f"s_movk_i32 s{sCnt}, 0x4000")
    E.nop(2); E.label(top)
    loads()
    E.wait_vm0()
    if valid_flags:
        I(f"v_cmp_ne_u32 vcc, 0x01010101, v{regs[0]}")
    else:
        r=list(regs); acc=None
        if len(r)==1: acc=r[0]
        else:
            acc=vT0
            if len(r)%2==1: I(f"v_max3_u32 v{acc}, v{r[0]}, v{r[1]}, v{r[2]}"); r=r[3:]
            else: I(f"v_max_u32 v{acc}, v{r[0]}, v{r[1]}"); r=r[2:]
            for i in range(0,len(r),2): I(f"v_max3_u32 v{acc}, v{acc}, v{r[i]}, v{r[i+1]}")
        I(f"v_cmp_eq_u32 vcc, -1, v{acc}")
    I(f"s_cbranch_vccz {done}")
    I("s_sleep 1")
    I(f"s_sub_u32 s{sCnt}, s{sCnt}, 1")
    I(f"s_cbranch_scc0 {top}")
    E.label(done); E.nop(2)

def exch_partial(base,final):
    pack16(ACC,T)
    I(f"s_lshl_b32 s{sT0}, s{sWG}, 14"); I(f"s_lshl_b32 s{sT1}, s{sWv}, 11"); I(f"s_add_u32 s{sT0}, s{sT0}, s{sT1}")
    I(f"s_add_u32 s{sT0}, s{sT0}, {base}")
    I(f"buffer_store_dwordx4 {v(T,4)}, v{vL16}, {srd(sWS)}, s{sT0} offen sc1")
    I(f"buffer_store_dwordx4 {v(T+4,4)}, v{vL16}, {srd(sWS)}, s{sT0} offen offset:1024 sc1")
def exch_partial2(base,final):
    I(f"s_lshl_b32 s{sT0}, s{sWG}, 14"); I(f"s_lshl_b32 s{sT1}, s{sWv}, 11"); I(f"s_add_u32 s{sT0}, s{sT0}, s{sT1}")
    I(f"s_add_u32 s{sT0}, s{sT0}, {base}")
    I(f"s_xor_b32 s{sT1}, s{sT0}, 0x4000"); I(f"s_xor_b32 s{sT2}, s{sT0}, 0x8000"); I(f"s_xor_b32 s{sT3}, s{sT0}, 0xc000")
    off=vL16
    if final:
        I(f"v_bfe_u32 v{vT1}, v{vLANE}, 3, 2")
        I(f"v_cmp_eq_u32 vcc, s{sS}, v{vT1}")
        I(f"v_mov_b32 v{vT1}, 0x7ffffff0")
        I(f"v_cndmask_b32 v{vT1}, v{vT1}, v{vL16}, vcc"); off=vT1
    def loads():
        for k,sr in enumerate((sT1,sT2,sT3)):
            for j in range(2):
                I(f"buffer_load_dwordx4 {v(G+8*k+4*j,4)}, v{off}, {srd(sWS)}, s{sr} offen offset:{1024*j} sc1")
    poll(loads,list(range(G,G+24)))
    for k in range(3):
        for i in range(8):
            I(f"v_lshlrev_b32 v{T}, 16, v{G+8*k+i}"); I(f"v_and_b32 v{T+1}, 0xffff0000, v{G+8*k+i}")
            I(f"v_pk_add_f32 {v(ACC+2*i,2)}, {v(ACC+2*i,2)}, {v(T,2)}")
    for i in range(8): I(f"v_pk_fma_f32 {v(X+2*i,2)}, {v(ACC+2*i,2)}, 0.5, {v(X+2*i,2)} op_sel_hi:[1,0,1]")

def ffn(pb,tagA,tagB,S1,tr1,S2,tr2,next1=None,hook=None):
    E.wait_vm(tagA); bar()
    if hook: hook()
    gemm(0,8,tr1,0,actr,0,True)
    E.wait_vm(tagB); bar(False)
    dma(S1,pb,524288,512,0,0,128,"fb1",rowS=256)
    gemm(8,8,tr2,0,actr,0,False)
    setC(NLOG2E); silu(ACC,16,T); pack16(ACC,T)
    I(f"ds_write_b128 v{vACTW}, {v(T,4)} offset:16384"); I(f"ds_write_b128 v{vACTW}, {v(T+4,4)} offset:17408")
    bar()
    dma(S2,pb,524288,512,128,0,128,"fb2",rowS=256)
    stamp()
    E.wait_vm("fb1"); bar(False)
    gemm(0,8,tr1,0,actr,16384,True)
    E.wait_vm("fb2"); bar(False)
    if next1: next1()
    gemm(8,8,tr2,0,actr,16384,False)

I(f"s_load_dwordx16 s[8:23], s[0:1], 0"); I("s_load_dwordx8 s[24:31], s[0:1], 64"); I("s_load_dwordx2 s[32:33], s[0:1], 96")
I("s_cmp_ge_u32 s2, 256"); I("s_cbranch_scc1 L_end")
stamp()
I(f"s_mov_b32 s{sWG}, s2")
I(f"s_and_b32 s{sS}, s2, 3"); I(f"s_lshr_b32 s{sTile}, s2, 2"); I(f"s_lshr_b32 s{sB}, s2, 7"); I(f"s_and_b32 s{sR}, s{sTile}, 31")
I(f"v_lshrrev_b32 v{vT0}, 6, v0"); I(f"v_and_b32 v{vLANE}, 63, v0")
I(f"v_readfirstlane_b32 s{sWv}, v{vT0}")
I(f"v_lshlrev_b32 v{vL16}, 4, v{vLANE}")
I(f"v_and_b32 v{vT1}, 7, v{vLANE}"); I(f"v_bfe_u32 v{vT2}, v{vLANE}, 4, 1"); I(f"v_lshlrev_b32 v{vT3}, 2, v{vT2}")
I(f"v_xor_b32 v{vT1}, v{vT1}, v{vT3}"); I(f"v_lshlrev_b32 v{vC16}, 4, v{vT1}")
I(f"v_and_b32 v{vT1}, 31, v{vLANE}"); I(f"v_lshlrev_b32 v{vT1}, 9, v{vT1}"); I(f"v_lshl_or_b32 v{vT1}, v{vT0}, 6, v{vT1}")
I(f"v_lshrrev_b32 v{vT3}, 5, v{vLANE}"); I(f"v_lshl_or_b32 v{vXOFF}, v{vT3}, 3, v{vT1}")
I(f"v_mov_b32 v{T}, -1"); I(f"v_mov_b32 v{T+1}, -1"); I(f"v_mov_b32 v{T+2}, -1"); I(f"v_mov_b32 v{T+3}, -1")
I("s_waitcnt lgkmcnt(0)")
for sr,p,n in ((sWS,pWS,0x10000000),(sD,pDBG,256)):
    I(f"s_mov_b32 s{sr}, s{p}"); I(f"s_mov_b32 s{sr+1}, s{p+1}"); I(f"s_mov_b32 s{sr+2}, {n}"); I(f"s_mov_b32 s{sr+3}, 0x20000")
I(f"s_mul_i32 s{sT0}, s{sB}, 512000")
for sr,p in ((sX,pX),(sO,pOUT)):
    I(f"s_add_u32 s{sr}, s{p}, s{sT0}"); I(f"s_addc_u32 s{sr+1}, s{p+1}, 0"); I(f"s_mov_b32 s{sr+2}, 512000"); I(f"s_mov_b32 s{sr+3}, 0x20000")
I(f"s_mov_b32 s{sW+3}, 0x20000")
I(f"s_lshl_b32 s{sT3}, s{sR}, 14")
for g in range(4): I(f"buffer_load_dwordx2 {v(ACC+2*g,2)}, v{vXOFF}, {srd(sX)}, s{sT3} offen offset:{16*g}","x")
I(f"s_lshl_b32 s{sT0}, s{sWG}, 14"); I(f"s_lshl_b32 s{sT1}, s{sWv}, 11"); I(f"s_add_u32 s{sT0}, s{sT0}, s{sT1}")
I(f"s_add_u32 s{sT1}, s{sT0}, {E6}")
for sr in (sT0,sT1):
    for j in range(2): I(f"buffer_store_dwordx4 {v(T,4)}, v{vL16}, {srd(sWS)}, s{sr} offen offset:{1024*j} sc1","rst")
I(f"s_lshl_b32 s{sT0}, s{sB}, 2"); I(f"s_add_u32 s{sT0}, s{sT0}, s{sS}"); I(f"s_lshl_b32 s{sT0}, s{sT0}, 5"); I(f"s_add_u32 s{sT0}, s{sT0}, s{sR}")
I(f"s_lshl_b32 s{sT0}, s{sT0}, 13"); I(f"s_lshl_b32 s{sT1}, s{sWv}, 10"); I(f"s_add_u32 s{sT0}, s{sT0}, s{sT1}"); I(f"s_add_u32 s{sT0}, s{sT0}, {KV}")
I(f"buffer_store_dwordx4 {v(T,4)}, v{vL16}, {srd(sWS)}, s{sT0} offen sc1","rst")
I(f"s_lshr_b32 s{sT0}, s{sWv}, 2"); I(f"s_lshl_b32 s{sT0}, s{sT0}, 20"); I(f"s_and_b32 s{sT1}, s{sWv}, 3"); I(f"s_lshl_b32 s{sT1}, s{sT1}, 10")
I(f"s_add_u32 s{sT0}, s{sT0}, s{sT1}"); I(f"s_lshl_b32 s{sT1}, s{sWG}, 12"); I(f"s_add_u32 s{sT0}, s{sT0}, s{sT1}"); I(f"s_add_u32 s{sT0}, s{sT0}, {E3}")
I(f"buffer_store_dwordx4 {v(T,4)}, v{vL16}, {srd(sWS)}, s{sT0} offen sc1","rst")
dma(SA,pW1a,524288,2048,0,0,128,"fa1",colS=512)
dma(SB,pW1a,524288,2048,128,0,128,"fa2",colS=512)
I(f"v_lshrrev_b32 v{vT3}, 5, v{vLANE}"); I(f"v_bfe_u32 v{vT1}, v{vLANE}, 2, 2"); I(f"v_lshl_or_b32 v{vT3}, v{vT3}, 2, v{vT1}")
I(f"v_lshlrev_b32 v{vTRA}, 7, v{vT3}")
I(f"v_and_b32 v{vT2}, 3, v{vLANE}"); I(f"v_lshl_or_b32 v{vTRA}, v{vT2}, 3, v{vTRA}")
I(f"v_bfe_u32 v{vT2}, v{vLANE}, 3, 1"); I(f"v_lshl_or_b32 v{vTRA}, v{vT2}, 6, v{vTRA}")
vTRP=255
I(f"v_mov_b32 v{vTRP}, v{vTRA}")
I(f"v_bfe_u32 v{vT2}, v{vLANE}, 4, 1"); I(f"v_lshl_or_b32 v{vTRA}, v{vT2}, 5, v{vTRA}")
I(f"s_and_b32 s{sT0}, s{sWv}, 1"); I(f"s_lshl_b32 s{sT0}, s{sT0}, 6"); I(f"s_lshr_b32 s{sT1}, s{sWv}, 1"); I(f"s_lshl_b32 s{sT1}, s{sT1}, 14")
I(f"v_xor_b32 v{vTRA}, s{sT0}, v{vTRA}"); I(f"v_add_u32 v{vTRA}, s{sT1}, v{vTRA}"); I(f"v_add_u32 v{vTRB}, 0x10000, v{vTRA}")
I(f"v_mul_u32_u24 v{vT1}, 0x8020, v{vT2}"); I(f"v_or_b32 v{vTRP}, v{vTRP}, v{vT1}")
I(f"s_and_b32 s{sT0}, s{sWv}, 3"); I(f"s_lshl_b32 s{sT0}, s{sT0}, 5"); I(f"v_xor_b32 v{vTRP}, s{sT0}, v{vTRP}")
I(f"v_add_u32 v{vACTR}, {ACT}, v{vL16}"); I(f"s_lshl_b32 s{sT0}, s{sWv}, 11"); I(f"v_add_u32 v{vACTW}, s{sT0}, v{vACTR}")
I(f"v_lshlrev_b32 v{vSTR}, 2, v{vLANE}"); I(f"v_add_u32 v{vSTR}, {STATS}, v{vSTR}"); I(f"s_lshl_b32 s{sT0}, s{sWv}, 8"); I(f"v_add_u32 v{vSTW}, s{sT0}, v{vSTR}")
E.wait_vm("x")
for i in range(8):
    I(f"v_lshlrev_b32 v{X+2*i}, 16, v{ACC+i}"); I(f"v_and_b32 v{X+2*i+1}, 0xffff0000, v{ACC+i}")
stamp()
ln_to_act()
E.wait_vm("rst")
def qkv1(): dma(SA,pQKV,393216,1536,0,0,512,"q1",kind="q",colS=128)
def flag_store():
    lab=E.newlab(); I(f"s_cmp_lg_u32 s{sWv}, 7"); I(f"s_cbranch_scc1 {lab}"); tb=E.mark(); E.cond+=1
    I(f"v_mov_b32 v{vT0}, 1"); I(f"v_mov_b32 v{vT1}, s{sWG}"); I("s_mov_b64 exec, 1")
    I(f"buffer_store_byte v{vT0}, v{vT1}, {srd(sD)}, 0 offen sc1"); I("s_mov_b64 exec, -1")
    E.cond-=1; E.join(lab,tb)
    stamp()
ffn(pW1b,"fa1","fa2",SA,vTRA,SB,vTRB,qkv1,flag_store)
stamp()
exch_partial(E1,False)
bar(False)
dma(SB,pQKV,393216,1536,128,0,512,"q2",kind="q",colS=128)
I(f"v_and_b32 v{vT1}, 31, v{vLANE}"); I(f"v_lshlrev_b32 v{vT1}, 2, v{vT1}"); I(f"s_lshl_b32 s{sT0}, s{sB}, 7")
poll(lambda: I(f"buffer_load_dword v{vT2}, v{vT1}, {srd(sD)}, s{sT0} offen sc1"),[vT2],True)
stamp()
exch_partial2(E1,False)
stamp()
dump(X)
ln_to_act()
bar()
def qkv_half(h):
    l_sw=E.newlab(); l_end=E.newlab()
    I(f"s_cmp_ge_u32 s{sWv}, 6"); I(f"s_cbranch_scc1 {l_end}"); tb0=E.mark()
    I(f"s_cmp_ge_u32 s{sWv}, 4"); I(f"s_cbranch_scc1 {l_sw}"); tb1=E.mark()
    gemm(8*h,8,vTRB if h else vTRA,0,actr,0,h==0)
    I(f"s_branch {l_end}"); tb2=E.mark()
    E.join(l_sw,tb1)
    gemm(8*h,8,vTRB if h else vTRA,0,actr,0,h==0,swap=True)
    E.join(l_end,tb2)
qkv_half(0); qkv_half(1)
pack16(ACC,T)
l1=E.newlab(); l2=E.newlab()
I(f"s_cmp_ge_u32 s{sWv}, 2"); I(f"s_cbranch_scc1 {l1}"); tb=E.mark()
I(f"ds_write_b128 v{vACTW}, {v(T,4)} offset:{QF-ACT}"); I(f"ds_write_b128 v{vACTW}, {v(T+4,4)} offset:{QF-ACT+1024}")
I(f"s_branch {l2}"); tb2=E.mark()
E.join(l1,tb); E.cond+=1
I(f"s_cmp_ge_u32 s{sWv}, 6"); I(f"s_cbranch_scc1 {l2}")
sKV=34
I(f"s_lshl_b32 s{sT0}, s{sB}, 2"); I(f"s_add_u32 s{sT0}, s{sT0}, s{sS}"); I(f"s_lshl_b32 s{sT0}, s{sT0}, 5"); I(f"s_add_u32 s{sT0}, s{sT0}, s{sR}")
I(f"s_lshl_b32 s{sT0}, s{sT0}, 13"); I(f"s_lshl_b32 s{sT1}, s{sWv}, 11"); I(f"s_add_u32 s{sT0}, s{sT0}, s{sT1}"); I(f"s_add_u32 s{sT0}, s{sT0}, {KV-4096}")
I(f"buffer_store_dwordx4 {v(T,4)}, v{vL16}, {srd(sWS)}, s{sT0} offen sc1")
I(f"buffer_store_dwordx4 {v(T+4,4)}, v{vL16}, {srd(sWS)}, s{sT0} offen offset:1024 sc1")
E.cond-=1; E.join(l2,tb)
bar()
stamp()
dma(SA,pWO,131072,512,0,0,128,"o1")
KF=G; VF=G+64; SS=G+128; QR=ACC
assert SS+64<=256
vTRPs=T+15
I(f"v_mov_b32 v{vTRPs}, v{vTRP}")
for ks in range(4): I(f"ds_read_b128 {v(QR+4*ks,4)}, v{vACTR} offset:{QF-ACT+ks*1024}")
I(f"s_lshl_b32 s{sT0}, s{sB}, 2"); I(f"s_add_u32 s{sT0}, s{sT0}, s{sS}"); I(f"s_lshl_b32 s{sT0}, s{sT0}, 18")
I(f"s_lshl_b32 s{sT1}, s{sWv}, 15"); I(f"s_add_u32 s{sT0}, s{sT0}, s{sT1}"); I(f"s_add_u32 s{sKV}, s{sT0}, {KV}")
I(f"v_and_b32 v{vT1}, 31, v{vLANE}"); I(f"v_lshlrev_b32 v{vT1}, 10, v{vT1}"); I(f"v_lshrrev_b32 v{vT2}, 5, v{vLANE}"); I(f"v_lshl_or_b32 v{vT1}, v{vT2}, 9, v{vT1}")
poll(lambda: I(f"buffer_load_dword v{vT2}, v{vT1}, {srd(sWS)}, s{sKV} offen offset:508 sc1"),[vT2])
stamp()
def kvloads():
    for part,base in ((0,KF),(1,VF)):
        for j in range(4):
            I(f"s_add_u32 s{sT0}, s{sKV}, {j*8192+part*4096}")
            for f in range(4): I(f"buffer_load_dwordx4 {v(base+16*j+4*f,4)}, v{vL16}, {srd(sWS)}, s{sT0} offen offset:{1024*f} sc1")
poll(kvloads,list(range(KF,KF+128)))
stamp()
I("s_waitcnt lgkmcnt(0)")
for j in range(4):
    for ks in range(4):
        I(f"v_mfma_f32_32x32x16_bf16 {v(SS+16*j,16)}, {v(KF+16*j+4*ks,4)}, {v(QR+4*ks,4)}, {'0' if ks==0 else v(SS+16*j,16)}")
lab=E.newlab(); E.nop(12)
I(f"s_cmp_lg_u32 s{sWv}, 7"); I(f"s_cbranch_scc1 {lab}"); tb=E.mark()
for r in range(4,16): I(f"v_mov_b32 v{SS+48+r}, 0xff800000")
E.join(lab,tb)
I(f"v_max3_f32 v{vT0}, v{SS}, v{SS+1}, v{SS+2}"); I(f"v_max_f32 v{vT1}, v{SS+3}, v{SS+4}")
for i in range(5,63,4):
    I(f"v_max3_f32 v{vT0}, v{vT0}, v{SS+i}, v{SS+i+1}")
    if i+3<64: I(f"v_max3_f32 v{vT1}, v{vT1}, v{SS+i+2}, v{SS+i+3}")
I(f"v_max3_f32 v{vT0}, v{vT0}, v{vT1}, v{SS+63}")
I(f"v_mov_b32 v{vT1}, v{vT0}"); I(f"v_permlane32_swap_b32 v{vT0}, v{vT1}"); I(f"v_max_f32 v{vT0}, v{vT0}, v{vT1}")
CS="0x3e38aa3b"
setC(CS)
I(f"v_mul_f32 v{vT2}, s{sC}, v{vT0}")
for i in range(0,64,2): I(f"v_pk_fma_f32 {v(SS+i,2)}, {v(SS+i,2)}, s[{sC}:{sC+1}], {v(vT2,2)} op_sel_hi:[1,1,0] neg_lo:[0,0,1] neg_hi:[0,0,1]")
PF=KF; OO=KF+32
for j in range(4):
    for i in range(16): I(f"v_exp_f32 v{SS+16*j+i}, v{SS+16*j+i}")
    for i in range(8): I(f"v_cvt_pk_bf16_f32 v{PF+8*j+i}, v{SS+16*j+2*i}, v{SS+16*j+2*i+1}")
    for dt in range(2):
        for u in range(2):
            I(f"v_mfma_f32_32x32x16_bf16 {v(OO+16*dt,16)}, {v(VF+16*j+8*dt+4*u,4)}, {v(PF+8*j+4*u,4)}, {'0' if (j==0 and u==0) else v(OO+16*dt,16)}")
I(f"v_pk_add_f32 {v(T,2)}, {v(SS,2)}, {v(SS+2,2)}"); I(f"v_pk_add_f32 {v(T+2,2)}, {v(SS+4,2)}, {v(SS+6,2)}")
for i in range(8,64,4):
    I(f"v_pk_add_f32 {v(T,2)}, {v(T,2)}, {v(SS+i,2)}"); I(f"v_pk_add_f32 {v(T+2,2)}, {v(T+2,2)}, {v(SS+i+2,2)}")
I(f"v_pk_add_f32 {v(T,2)}, {v(T,2)}, {v(T+2,2)}"); I(f"v_add_f32 v{vT1}, v{T}, v{T+1}")
I(f"v_mov_b32 v{vT3}, v{vT1}"); I(f"v_permlane32_swap_b32 v{vT1}, v{vT3}"); I(f"v_add_f32 v{vT1}, v{vT1}, v{vT3}")
I(f"v_cmp_gt_u32 vcc, 32, v{vLANE}"); I(f"v_cndmask_b32 v{vT1}, v{vT1}, v{vT2}, vcc")
I(f"ds_write_b32 v{vSTW}, v{vT1} offset:{MST-STATS}")
I(f"v_mov_b32 v{vTRP}, v{vTRPs}")
I(f"s_lshl_b32 s{sT0}, s{sWv}, 13"); I(f"s_add_u32 s{sT0}, s{sT0}, {SB}"); I(f"v_add_u32 v{vT0}, s{sT0}, v{vL16}")
for q in range(8): I(f"ds_write_b128 v{vT0}, {v(OO+4*q,4)} offset:{q*1024}")
bar()
stamp()
lg=E.newlab(); le=E.newlab()
I(f"s_cmp_ge_u32 s{sWv}, 4"); I(f"s_cbranch_scc1 {lg}"); tb=E.mark(); E.cond+=1
I(f"v_and_b32 v{vT0}, 31, v{vLANE}"); I(f"v_lshlrev_b32 v{vT0}, 2, v{vT0}"); I(f"v_add_u32 v{vT0}, {MST}, v{vT0}"); I(f"v_add_u32 v{vT1}, 128, v{vT0}")
MM=T; LL=T+8
for i in range(4): I(f"ds_read2st64_b32 {v(MM+2*i,2)}, v{vT0} offset0:{2*i} offset1:{2*i+1}")
for i in range(4): I(f"ds_read2st64_b32 {v(LL+2*i,2)}, v{vT1} offset0:{2*i} offset1:{2*i+1}")
I(f"s_lshl_b32 s{sT0}, s{sWv}, 11"); I(f"s_add_u32 s{sT0}, s{sT0}, {SB}"); I(f"v_add_u32 v{vT2}, s{sT0}, v{vL16}")
for w in range(8):
    for i in range(2): I(f"ds_read_b128 {v(G+8*w+4*i,4)}, v{vT2} offset:{w*8192+i*1024}")
I("s_waitcnt lgkmcnt(15)")
I(f"v_max3_f32 v{vT0}, v{MM}, v{MM+1}, v{MM+2}"); I(f"v_max3_f32 v{vT0}, v{vT0}, v{MM+3}, v{MM+4}"); I(f"v_max3_f32 v{vT0}, v{vT0}, v{MM+5}, v{MM+6}"); I(f"v_max_f32 v{vT0}, v{vT0}, v{MM+7}")
for i in range(8): I(f"v_sub_f32 v{MM+i}, v{MM+i}, v{vT0}")
for i in range(8): I(f"v_exp_f32 v{MM+i}, v{MM+i}")
I(f"v_mul_f32 v{vT1}, v{MM}, v{LL}")
for i in range(1,8): I(f"v_fmac_f32 v{vT1}, v{MM+i}, v{LL+i}")
I(f"v_rcp_f32 v{vT1}, v{vT1}")
for i in range(8): I(f"v_mul_f32 v{MM+i}, v{MM+i}, v{vT1}")
I("s_waitcnt lgkmcnt(0)")
for w in range(8):
    sel="op_sel:[0,1,0] op_sel_hi:[1,1,1]" if w&1 else "op_sel_hi:[1,0,1]"
    for i in range(4):
        if w==0: I(f"v_pk_mul_f32 {v(ACC+2*i,2)}, {v(G+2*i,2)}, {v(MM,2)} op_sel_hi:[1,0]")
        else: I(f"v_pk_fma_f32 {v(ACC+2*i,2)}, {v(G+8*w+2*i,2)}, {v(MM+(w&~1),2)}, {v(ACC+2*i,2)} {sel}")
for i in range(4): I(f"v_cvt_pk_bf16_f32 v{LL+i}, v{ACC+2*i}, v{ACC+2*i+1}")
I(f"s_lshl_b32 s{sT0}, s{sWG}, 12"); I(f"s_lshl_b32 s{sT1}, s{sWv}, 10"); I(f"s_add_u32 s{sT0}, s{sT0}, s{sT1}"); I(f"s_add_u32 s{sT0}, s{sT0}, {E3}")
I(f"buffer_store_dwordx4 {v(LL,4)}, v{vL16}, {srd(sWS)}, s{sT0} offen sc1")
I(f"s_lshl_b32 s{sT0}, s{sS}, 12"); I(f"s_add_u32 s{sT0}, s{sT0}, s{sT1}"); I(f"v_add_u32 v{vT0}, s{sT0}, v{vACTR}")
I(f"ds_write_b128 v{vT0}, {v(LL,4)}")
I("s_waitcnt lgkmcnt(0)"); I("s_barrier")
I(f"s_branch {le}"); tb2=E.mark()
E.join(lg,tb)
I("s_barrier")
E.cond-=1; E.join(le,tb2)
dma(SB,pWO,131072,512,128,0,128,"o2")
lg=E.newlab()
I(f"s_cmp_lt_u32 s{sWv}, 4"); I(f"s_cbranch_scc1 {lg}"); tb=E.mark(); E.cond+=1
I(f"s_lshl_b32 s{sT0}, s{sWG}, 12"); I(f"s_lshl_b32 s{sT1}, s{sWv}, 10"); I(f"s_add_u32 s{sT0}, s{sT0}, s{sT1}"); I(f"s_add_u32 s{sT0}, s{sT0}, {E3-4096}")
I(f"s_xor_b32 s{sT1}, s{sT0}, 0x1000"); I(f"s_xor_b32 s{sT2}, s{sT0}, 0x2000"); I(f"s_xor_b32 s{sT3}, s{sT0}, 0x3000")
def e3loads():
    for k,sr in enumerate((sT1,sT2,sT3)): I(f"buffer_load_dwordx4 {v(G+4*k,4)}, v{vL16}, {srd(sWS)}, s{sr} offen sc1")
poll(e3loads,list(range(G,G+12)))
for k,sr in enumerate((sT1,sT2,sT3)):
    I(f"s_and_b32 s{sr}, s{sr}, 0x3fff"); I(f"v_add_u32 v{vT0}, s{sr}, v{vACTR}"); I(f"ds_write_b128 v{vT0}, {v(G+4*k,4)}")
E.cond-=1; E.join(lg,tb)
E.wait_vm("o1"); bar()
stamp()
gemm(0,8,vTRA,0,actr,0,True)
E.wait_vm("o2"); bar(False)
dma(SA,pPW1,262144,1024,0,0,512,"p1",kind="p",colS=128)
gemm(8,8,vTRB,0,actr,0,False)
for i in range(8): I(f"v_pk_add_f32 {v(X+2*i,2)}, {v(X+2*i,2)}, {v(ACC+2*i,2)}")
dump(X)
ln_to_act(lambda: dma(SB,pPW2,131072,512,0,0,128,"c1"))
DWR=G+128
I(f"s_and_b32 s{sT0}, s{sWv}, 1"); I(f"s_lshl_b32 s{sT0}, s{sT0}, 6"); I(f"v_or_b32 v{vT0}, s{sT0}, v{vLANE}")
I(f"v_lshrrev_b32 v{vT1}, 3, v{vT0}"); I(f"v_lshlrev_b32 v{vT1}, 5, v{vT1}")
I(f"v_bfe_u32 v{vT2}, v{vT0}, 1, 1"); I(f"v_lshl_or_b32 v{vT1}, v{vT2}, 4, v{vT1}")
I(f"v_bfe_u32 v{vT2}, v{vT0}, 2, 1"); I(f"v_lshl_or_b32 v{vT1}, v{vT2}, 3, v{vT1}")
I(f"v_and_b32 v{vT2}, 1, v{vT0}"); I(f"v_lshl_or_b32 v{vT1}, v{vT2}, 2, v{vT1}")
setW(pDW,31*512)
for i in range(31):
    if i%8==0: I(f"s_movk_i32 s{sT0}, {i*512}")
    I(f"buffer_load_dword v{DWR+i}, v{vT1}, {srd(sW)}, s{sT0} offen offset:{(i%8)*512}","dw")
E.wait_vm("p1"); bar()
stamp()
lg=E.newlab()
I(f"s_cmp_ge_u32 s{sWv}, 4"); I(f"s_cbranch_scc1 {lg}"); tb=E.mark(); E.cond+=1
gemm(0,16,vTRP,0,actr,0,True)
setC(NLOG2E)
for i in range(0,8,2): I(f"v_pk_mul_f32 {v(T+i,2)}, {v(ACC+8+i,2)}, s[{sC}:{sC+1}]")
for i in range(8): I(f"v_exp_f32 v{T+i}, v{T+i}")
for i in range(0,8,2): I(f"v_pk_add_f32 {v(T+i,2)}, {v(T+i,2)}, 1.0 op_sel_hi:[1,0]")
for i in range(8): I(f"v_rcp_f32 v{T+i}, v{T+i}")
for i in range(0,8,2): I(f"v_pk_mul_f32 {v(T+i,2)}, {v(ACC+i,2)}, {v(T+i,2)}")
for i in range(4): I(f"v_cvt_pk_bf16_f32 v{T+i}, v{T+2*i}, v{T+2*i+1}")
I(f"s_lshl_b32 s{sT0}, s{sR}, 5"); I(f"v_and_b32 v{vT0}, 31, v{vLANE}"); I(f"v_add_u32 v{vT0}, s{sT0}, v{vT0}"); I(f"v_cmp_gt_u32 vcc, 1000, v{vT0}")
for i in range(4): I(f"v_cndmask_b32 v{T+i}, 0, v{T+i}, vcc")
I(f"s_lshl_b32 s{sT0}, s{sWG}, 12"); I(f"s_lshl_b32 s{sT1}, s{sWv}, 10"); I(f"s_add_u32 s{sT0}, s{sT0}, s{sT1}"); I(f"s_add_u32 s{sT0}, s{sT0}, {E4}")
I(f"buffer_store_dwordx4 {v(T,4)}, v{vL16}, {srd(sWS)}, s{sT0} offen sc1")
E.cond-=1; E.join(lg,tb)
bar(False)
dma(SA,pPW2,131072,512,128,0,128,"c2")
WE=G; WOd=G+32
sPL,sPH=sT2,sT3
E.wait_vm("dw")
I(f"v_mov_b32 v{DWR+31}, 0")
I(f"s_mov_b32 s34, 0x05040100"); I(f"s_mov_b32 s35, 0x07060302")
for m in range(16):
    for c in range(2):
        I(f"v_perm_b32 v{WE+2*m+c}, v{DWR+2*m+1}, v{DWR+2*m}, s{34+c}")
        I(f"v_perm_b32 v{WOd+2*m+c}, v{DWR+2*m}, v{DWR+(2*m-1 if m else 31)}, s{34+c}")
stamp()
HR=G+64
I(f"s_lshl_b32 s{sT0}, s{sTile}, 14"); I(f"s_lshl_b32 s{sT1}, s{sWv}, 11"); I(f"s_add_u32 s{sT0}, s{sT0}, s{sT1}"); I(f"s_add_u32 s{sT0}, s{sT0}, {E4}")
I(f"s_sub_u32 s{sT1}, s{sT0}, 0x4000")
I(f"v_xor_b32 v{vT1}, 0x100, v{vL16}"); I(f"v_bfe_u32 v{vT2}, v{vLANE}, 4, 1"); I(f"v_lshl_or_b32 v{vT1}, v{vT2}, 15, v{vT1}")
I(f"v_mul_u32_u24 v{vT3}, 31, v{vT2}"); I(f"v_cmp_eq_u32 vcc, s{sR}, v{vT3}"); I(f"v_mov_b32 v{vT3}, 0x7ffffff0"); I(f"v_cndmask_b32 v{vT1}, v{vT1}, v{vT3}, vcc")
def e4loads():
    for i in range(2): I(f"buffer_load_dwordx4 {v(HR+4*i,4)}, v{vL16}, {srd(sWS)}, s{sT0} offen offset:{1024*i} sc1")
    for i in range(2): I(f"buffer_load_dwordx4 {v(HR+8+4*i,4)}, v{vT1}, {srd(sWS)}, s{sT1} offen offset:{1024*i} sc1")
poll(e4loads,list(range(HR,HR+16)))
stamp()
I(f"v_lshrrev_b32 v{vT0}, 5, v{vLANE}"); I(f"s_lshl_b32 s{sT0}, s{sWv}, 2"); I(f"v_or_b32 v{vT0}, s{sT0}, v{vT0}")
I(f"v_and_b32 v{vT1}, 7, v{vLANE}"); I(f"v_xor_b32 v{vT0}, v{vT0}, v{vT1}"); I(f"v_lshlrev_b32 v{vT0}, 4, v{vT0}"); I(f"v_add_u32 v{vT0}, {HIM}, v{vT0}")
I(f"v_and_b32 v{vT1}, 31, v{vLANE}"); I(f"v_lshl_add_u32 v{vT1}, v{vT1}, 9, v{vT0}")
I(f"v_xor_b32 v{vT3}, 32, v{vT1}")
I(f"ds_write_b128 v{vT1}, {v(HR,4)} offset:8192"); I(f"ds_write_b128 v{vT3}, {v(HR+4,4)} offset:8192")
I(f"v_lshl_add_u32 v{vT1}, v{vT2}, 14, v{vT1}")
I(f"v_xor_b32 v{vT3}, 32, v{vT1}")
I(f"ds_write_b128 v{vT1}, {v(HR+8,4)}"); I(f"ds_write_b128 v{vT3}, {v(HR+12,4)}")
AD=T
I(f"s_and_b32 s{sT0}, s{sWv}, 1"); I(f"s_lshl_b32 s{sT0}, s{sT0}, 8"); I(f"v_lshlrev_b32 v{vT0}, 2, v{vLANE}"); I(f"v_or_b32 v{vT0}, s{sT0}, v{vT0}")
I(f"s_lshr_b32 s{sT1}, s{sWv}, 1"); I(f"s_lshl_b32 s{sT1}, s{sT1}, 12"); I(f"s_add_u32 s{sT1}, s{sT1}, {HIM}"); I(f"v_add_u32 v{vT1}, s{sT1}, v{vT0}")
for k in range(8): I(f"v_xor_b32 v{AD+k}, {16*k}, v{vT1}")
bar()
RW=G+64; DP=G+112
def rw(k):
    if k<32: return RW+2*((k&7)+8*(k>>4))+((k>>3)&1)
    return RW+k
for k in list(range(8))+list(range(16,24)): I(f"ds_read2st64_b32 {v(rw(k),2)}, v{AD+(k&7)} offset0:{2*k} offset1:{2*k+16}")
for k in range(32,40): I(f"ds_read_b32 v{rw(k)}, v{AD+(k&7)} offset:{512*k}")
for i in range(16): I(f"v_mov_b32 v{ACC+i}, 0")
I("s_waitcnt lgkmcnt(0)")
I("s_barrier")
for k in range(20):
    for c in range(2): I(f"v_perm_b32 v{DP+2*k+c}, v{rw(2*k+1)}, v{rw(2*k)}, s{34+c}")
for m in range(16):
    for u in range(8):
        for c in range(2):
            if u&1: I(f"v_dot2c_f32_bf16 v{ACC+2*u+c}, v{DP+2*((u+1)//2+m)+c}, v{WE+2*m+c}")
            else:   I(f"v_dot2c_f32_bf16 v{ACC+2*u+c}, v{DP+2*(u//2+m)+c}, v{WOd+2*m+c}")
setC(NLOG2E); silu(ACC,16,G+64); pack16(ACC,G+64)
I(f"v_lshrrev_b32 v{vT1}, 4, v{vT0}")
I(f"v_and_b32 v{vT2}, 7, v{vT1}"); I(f"v_lshlrev_b32 v{vT2}, 4, v{vT2}"); I(f"v_lshl_or_b32 v{vT2}, v{vT1}, 9, v{vT2}")
I(f"v_and_b32 v{vT3}, 12, v{vT0}"); I(f"v_or_b32 v{vT2}, v{vT2}, v{vT3}")
I(f"s_lshr_b32 s{sT1}, s{sWv}, 1"); I(f"s_lshl_b32 s{sT1}, s{sT1}, 7"); I(f"s_add_u32 s{sT1}, s{sT1}, {ACT}"); I(f"v_add_u32 v{vT2}, s{sT1}, v{vT2}")
for u in range(8):
    I(f"v_xor_b32 v{AD+u}, {16*u}, v{vT2}"); I(f"ds_write_b32 v{AD+u}, v{G+64+u}")
RA=T+8
I(f"v_lshrrev_b32 v{vT1}, 5, v{vLANE}"); I(f"v_lshlrev_b32 v{vT1}, 4, v{vT1}"); I(f"v_xor_b32 v{vT1}, v{vT1}, v{vACTR}")
for q in range(4): I(f"v_xor_b32 v{RA+q}, {32*q}, v{vT1}")
bar()
stamp()
ra=lambda ks: RA+(ks&3)
gemm(0,8,vTRB,0,ra,0,True)
bar(False)
dma(SB,pW2a,524288,2048,0,0,128,"ga1",colS=512)
gemm(8,8,vTRA,0,ra,0,False)
for i in range(8): I(f"v_pk_add_f32 {v(X+2*i,2)}, {v(X+2*i,2)}, {v(ACC+2*i,2)}")
dump(X)
ln_to_act(lambda: dma(SA,pW2a,524288,2048,128,0,128,"ga2",colS=512))
stamp()
ffn(pW2b,"ga1","ga2",SB,vTRB,SA,vTRA)
stamp()
exch_partial(E6,True)
exch_partial2(E6,True)
stamp()
bar(False)
ln_stats(); ln_apply(T); pack16(T,T)
I(f"v_bfe_u32 v{vT1}, v{vLANE}, 3, 2"); I(f"v_cmp_eq_u32 vcc, s{sS}, v{vT1}"); I(f"v_mov_b32 v{vT1}, 0x7ffffff0"); I(f"v_cndmask_b32 v{vT1}, v{vT1}, v{vXOFF}, vcc")
I(f"s_lshl_b32 s{sT3}, s{sR}, 14")
for g in range(4): I(f"buffer_store_dwordx2 {v(T+2*g,2)}, v{vT1}, {srd(sO)}, s{sT3} offen offset:{16*g}")
stamp()
if DBG&1:
    I(f"s_lshl_b32 s{sT0}, s{sWG}, 10"); I(f"s_lshl_b32 s{sT1}, s{sWv}, 7"); I(f"s_add_u32 s{sT0}, s{sT0}, s{sT1}"); I(f"s_add_u32 s{sT0}, s{sT0}, {TS}")
    I(f"v_mov_b32 v{vT1}, 0")
    for i in range(nts[0]):
        I(f"v_mov_b32 v{vT0}, s{sTS+i}"); I(f"buffer_store_dword v{vT0}, v{vT1}, {srd(sWS)}, s{sT0} offen offset:{4*i}")
    assert sTS+nts[0]<=100, nts
E.label("L_end"); I("s_endpgm")

hdr=open("standalone__conformer_family_zipformer__speech.s.ref").read().split("; Override")[0]
out=hdr+"; @launch grid=(256,1,1) block=(512,1,1) lds=163840\n"
out+=f'.amdgcn_target "amdgcn-amd-amdhsa--gfx950"\n.text\n.globl {KN}\n.p2align 8\n.type {KN},@function\n{KN}:\n'
out+="\n".join(E.L)+"\n"
out+=f'''.section .rodata,"a"
.p2align 6
.amdhsa_kernel {KN}
  .amdhsa_next_free_vgpr 256
  .amdhsa_next_free_sgpr 102
  .amdhsa_accum_offset 256
  .amdhsa_group_segment_fixed_size 0
  .amdhsa_kernarg_size 104
  .amdhsa_user_sgpr_count 2
  .amdhsa_user_sgpr_kernarg_segment_ptr 1
  .amdhsa_system_sgpr_workgroup_id_x 1
.end_amdhsa_kernel
'''
open(sys.argv[1],"w").write(out)
print("instrs",len(E.L),"stamps",nts[0],"dumps",ndump[0])
```

```python
import sys
from emit import Emit
DBG = int(sys.argv[2]) if len(sys.argv)>2 else 0
E=Emit(); I=E.I
KN="standalone__conformer_family_zipformer__speech_kernel"
SA=0; SB=65536; ACT=131072; AUX=147456; STATS=AUX; QF=AUX+4096; MST=AUX+8192; HIM=ACT
E1=0; KV=0x400000; E3=0x600000; E4=0x700000; E6=0x800000; DUMP=0x1000000; TS=0x3000000
pX,pW1a,pW1b,pQKV,pWO,pPW1,pDW,pPW2,pW2a,pW2b,pOUT,pDBG,pWS=[8+2*i for i in range(13)]
sX,sO,sWS,sW,sD=36,40,44,48,52
sS,sTile,sB,sR,sWv=56,57,58,59,60
sT0,sT1,sT2,sT3,sCnt=61,62,63,3,4
sC=6
sWG=5
sTS=66; sXCC=64; sFAST=65
def srd(n): return f"s[{n}:{n+3}]"
vTID,vLANE,vL16,vTRA,vTRB,vDMA,vC16,vACTW,vACTR,vSTW,vSTR,vXOFF,vT0,vT1,vT2,vT3=range(16)
X=16; ACC=32; T=48; G=64
def v(n,k=1): return f"v{n}" if k==1 else f"v[{n}:{n+k-1}]"
nts=[0]
def stamp():
    if DBG&1:
        I("s_memtime s[100:101]" if DBG&4 else "s_memrealtime s[100:101]"); I("s_waitcnt lgkmcnt(0)"); I(f"s_mov_b32 s{sTS+nts[0]}, s100"); nts[0]+=1
ndump=[0]
def dump(reg,n=16):
    if DBG&2:
        i=ndump[0]; ndump[0]+=1
        I(f"s_lshl_b32 s{sT0}, s{sWG}, 15"); I(f"s_lshl_b32 s{sT1}, s{sWv}, 12"); I(f"s_add_u32 s{sT0}, s{sT0}, s{sT1}")
        I(f"s_add_u32 s{sT0}, s{sT0}, {DUMP+i*(1<<23)}")
        for q in range(n//4):
            I(f"buffer_store_dwordx4 {v(reg+4*q,4)}, v{vL16}, {srd(sWS)}, s{sT0} offen offset:{q*1024}")
        E.wait_vm0()
def setW(p,nbytes):
    I(f"s_mov_b32 s{sW}, s{p}"); I(f"s_mov_b32 s{sW+1}, s{p+1}"); I(f"s_mov_b32 s{sW+2}, {nbytes}")
def bar(lgkm=True):
    if lgkm: I("s_waitcnt lgkmcnt(0)")
    I("s_barrier")

def dma(slot,p,nbytes,stride,row0,col0,colstep,tag,kind="n",rowS=0,colS=0):
    setW(p,nbytes)
    I(f"v_lshrrev_b32 v{vT0}, 3, v{vLANE}")
    I(f"s_movk_i32 s{sT0}, {stride}")
    I(f"v_mad_u32_u24 v{vDMA}, v{vT0}, s{sT0}, v{vC16}")
    if kind=="p":
        I(f"s_lshr_b32 s{sT1}, s{sWv}, 2")
        I(f"s_and_b32 s{sT2}, s{sWv}, 3")
        I(f"s_lshl_b32 s{sT3}, s{sT1}, 5")
        I(f"v_xor_b32 v{vDMA}, s{sT3}, v{vDMA}")
    else:
        I(f"s_lshr_b32 s{sT1}, s{sWv}, 1")
        I(f"s_and_b32 s{sT2}, s{sWv}, 1")
    I(f"s_mul_i32 s{sT1}, s{sT1}, {colstep}")
    I(f"s_mul_i32 s{sT2}, s{sT2}, {64*stride}")
    I(f"s_add_u32 s{sT1}, s{sT1}, s{sT2}")
    I(f"s_mul_i32 s{sT2}, s{sS}, {rowS*stride+colS}")
    I(f"s_add_u32 s{sT1}, s{sT1}, s{sT2}")
    I(f"s_add_u32 s{sT1}, s{sT1}, {row0*stride+col0}")
    I(f"s_lshl_b32 s{sT2}, s{sWv}, 13")
    I(f"s_add_u32 m0, s{sT2}, {slot}")
    if kind=="q":
        lab=E.newlab(); I(f"s_cmp_ge_u32 s{sWv}, 6"); I(f"s_cbranch_scc1 {lab}"); tb=E.mark(); E.cond+=1
    for i in range(8):
        I(f"buffer_load_dwordx4 v{vDMA}, {srd(sW)}, s{sT1} offen lds",tag)
        if i<7:
            I(f"s_add_u32 s{sT1}, s{sT1}, {8*stride}"); I("s_add_u32 m0, m0, 0x400")
    if kind=="q":
        E.cond-=1; E.join(lab,tb)

def gemm(ks0,nks,tra,troff,baddr,boff,first,swap=False,acc=ACC,ring=G,depth=5):
    def rd(i):
        r=ring+8*(i%(depth+1)); ks=ks0+i
        I(f"ds_read_b128 {v(r+4,4)}, v{baddr(ks)} offset:{boff+ks*1024}")
        I(f"ds_read_b64_tr_b16 {v(r,2)}, v{tra} offset:{troff+i*2048}")
        I(f"ds_read_b64_tr_b16 {v(r+2,2)}, v{tra} offset:{troff+i*2048+1024}")
    for i in range(min(depth,nks)): rd(i)
    for i in range(nks):
        out=min(nks,i+depth)-(i+1)
        I(f"s_waitcnt lgkmcnt({3*out})")
        r=ring+8*(i%(depth+1))
        a,b=(v(r,4),v(r+4,4)) if not swap else (v(r+4,4),v(r,4))
        c="0" if (first and i==0) else v(acc,16)
        I(f"v_mfma_f32_32x32x16_bf16 {v(acc,16)}, {a}, {b}, {c}")
        if i+depth<nks: rd(i+depth)
actr=lambda ks: vACTR

def pack16(src,dst):
    for i in range(8): I(f"v_cvt_pk_bf16_f32 v{dst+i}, v{src+2*i}, v{src+2*i+1}")

def ln_stats(after_bar=None):
    I(f"v_pk_mul_f32 {v(T,2)}, {v(X,2)}, {v(X,2)}")
    I(f"v_pk_add_f32 {v(T+2,2)}, {v(X,2)}, {v(X+2,2)}")
    for i in range(1,8): I(f"v_pk_fma_f32 {v(T,2)}, {v(X+2*i,2)}, {v(X+2*i,2)}, {v(T,2)}")
    for i in range(2,8): I(f"v_pk_add_f32 {v(T+2,2)}, {v(T+2,2)}, {v(X+2*i,2)}")
    I(f"v_add_f32 v{vT1}, v{T}, v{T+1}")
    I(f"v_add_f32 v{vT0}, v{T+2}, v{T+3}")
    I(f"v_permlane32_swap_b32 v{vT0}, v{vT1}")
    I(f"v_add_f32 v{vT0}, v{vT0}, v{vT1}")
    I(f"ds_write_b32 v{vSTW}, v{vT0}")
    bar()
    for i in range(4): I(f"ds_read2st64_b32 {v(T+2*i,2)}, v{vSTR} offset0:{2*i} offset1:{2*i+1}")
    if after_bar: after_bar()
    I("s_waitcnt lgkmcnt(0)")
    I(f"v_pk_add_f32 {v(T,2)}, {v(T,2)}, {v(T+2,2)}")
    I(f"v_pk_add_f32 {v(T+4,2)}, {v(T+4,2)}, {v(T+6,2)}")
    I(f"v_pk_add_f32 {v(T,2)}, {v(T,2)}, {v(T+4,2)}")
    I(f"v_add_f32 v{vT0}, v{T}, v{T+1}")
    I(f"v_mul_f32 v{vT0}, 0x3b800000, v{vT0}")
    I(f"v_mov_b32 v{vT1}, v{vT0}")
    I(f"v_permlane32_swap_b32 v{vT0}, v{vT1}")
    I(f"v_fma_f32 v{vT1}, -v{vT0}, v{vT0}, v{vT1}")
    I(f"v_max_f32 v{vT1}, 0, v{vT1}")
    I(f"v_add_f32 v{vT1}, 0x3727c5ac, v{vT1}")
    I(f"v_rsq_f32 v{vT2}, v{vT1}")
    I(f"v_mul_f32 v{vT3}, -v{vT0}, v{vT2}" if False else f"v_mul_f32_e64 v{vT3}, -v{vT0}, v{vT2}")
def ln_apply(dst):
    for i in range(8):
        I(f"v_pk_fma_f32 {v(dst+2*i,2)}, {v(X+2*i,2)}, {v(vT2,2)}, {v(vT2,2)} op_sel:[0,0,1] op_sel_hi:[1,0,1]")
def ln_to_act(after_bar=None):
    ln_stats(after_bar); ln_apply(T); pack16(T,T)
    I(f"ds_write_b128 v{vACTW}, {v(T,4)}"); I(f"ds_write_b128 v{vACTW}, {v(T+4,4)} offset:1024")

def silu(src,n,tmp):
    for i in range(0,n,2): I(f"v_pk_mul_f32 {v(tmp+i,2)}, {v(src+i,2)}, s[{sC}:{sC+1}]")
    for i in range(n): I(f"v_exp_f32 v{tmp+i}, v{tmp+i}")
    for i in range(0,n,2): I(f"v_pk_add_f32 {v(tmp+i,2)}, {v(tmp+i,2)}, 1.0 op_sel_hi:[1,0]")
    for i in range(n): I(f"v_rcp_f32 v{tmp+i}, v{tmp+i}")
    for i in range(0,n,2): I(f"v_pk_mul_f32 {v(src+i,2)}, {v(src+i,2)}, {v(tmp+i,2)}")
def setC(val):
    I(f"s_mov_b32 s{sC}, {val}"); I(f"s_mov_b32 s{sC+1}, {val}")
NLOG2E="0xbfb8aa3b"

def poll(loads,regs,valid_flags=False):
    top=E.newlab("P"); done=E.newlab("D")
    I(f"s_movk_i32 s{sCnt}, 0x4000")
    E.nop(2); E.label(top)
    loads()
    E.wait_vm0()
    if valid_flags:
        I(f"v_and_b32 v{vT0}, {valid_flags}, v{regs[0]}"); I(f"v_cmp_ne_u32 vcc, {valid_flags}, v{vT0}")
    else:
        r=list(regs); acc=None
        if len(r)==1: acc=r[0]
        else:
            acc=vT0
            if len(r)%2==1: I(f"v_max3_u32 v{acc}, v{r[0]}, v{r[1]}, v{r[2]}"); r=r[3:]
            else: I(f"v_max_u32 v{acc}, v{r[0]}, v{r[1]}"); r=r[2:]
            for i in range(0,len(r),2): I(f"v_max3_u32 v{acc}, v{acc}, v{r[i]}, v{r[i+1]}")
        I(f"v_cmp_eq_u32 vcc, -1, v{acc}")
    I(f"s_cbranch_vccz {done}")
    I("s_sleep 1")
    I(f"s_sub_u32 s{sCnt}, s{sCnt}, 1")
    I(f"s_cbranch_scc0 {top}")
    E.label(done); E.nop(2)

def exch_partial(base,final):
    pack16(ACC,T)
    I(f"s_lshl_b32 s{sT0}, s{sWG}, 14"); I(f"s_lshl_b32 s{sT1}, s{sWv}, 11"); I(f"s_add_u32 s{sT0}, s{sT0}, s{sT1}")
    I(f"s_add_u32 s{sT0}, s{sT0}, {base}")
    pub([f"buffer_store_dwordx4 {v(T,4)}, v{vL16}, {srd(sWS)}, s{sT0} offen", f"buffer_store_dwordx4 {v(T+4,4)}, v{vL16}, {srd(sWS)}, s{sT0} offen offset:1024"])
def exch_partial2(base,final):
    I(f"s_lshl_b32 s{sT0}, s{sWG}, 14"); I(f"s_lshl_b32 s{sT1}, s{sWv}, 11"); I(f"s_add_u32 s{sT0}, s{sT0}, s{sT1}")
    I(f"s_add_u32 s{sT0}, s{sT0}, {base}")
    I(f"s_xor_b32 s{sT1}, s{sT0}, 0x4000"); I(f"s_xor_b32 s{sT2}, s{sT0}, 0x8000"); I(f"s_xor_b32 s{sT3}, s{sT0}, 0xc000")
    off=vL16
    if final:
        I(f"v_bfe_u32 v{vT1}, v{vLANE}, 3, 2")
        I(f"v_cmp_eq_u32 vcc, s{sS}, v{vT1}")
        I(f"v_mov_b32 v{vT1}, 0x7ffffff0")
        I(f"v_cndmask_b32 v{vT1}, v{vT1}, v{vL16}, vcc"); off=vT1
    def loads():
        for k,sr in enumerate((sT1,sT2,sT3)):
            for j in range(2):
                I(f"buffer_load_dwordx4 {v(G+8*k+4*j,4)}, v{off}, {srd(sWS)}, s{sr} offen offset:{1024*j} sc1")
    poll(loads,list(range(G,G+24)))
    for k in range(3):
        for i in range(8):
            I(f"v_lshlrev_b32 v{T}, 16, v{G+8*k+i}"); I(f"v_and_b32 v{T+1}, 0xffff0000, v{G+8*k+i}")
            I(f"v_pk_add_f32 {v(ACC+2*i,2)}, {v(ACC+2*i,2)}, {v(T,2)}")
    for i in range(8): I(f"v_pk_fma_f32 {v(X+2*i,2)}, {v(ACC+2*i,2)}, 0.5, {v(X+2*i,2)} op_sel_hi:[1,0,1]")

def ffn(pb,tagA,tagB,S1,tr1,S2,tr2,next1=None,hook=None):
    E.wait_vm(tagA); bar()
    gemm(0,8,tr1,0,actr,0,True)
    E.wait_vm(tagB); bar(False)
    if hook: hook()
    dma(S1,pb,524288,512,0,0,128,"fb1",rowS=256)
    gemm(8,8,tr2,0,actr,0,False)
    setC(NLOG2E); silu(ACC,16,T); pack16(ACC,T)
    I(f"ds_write_b128 v{vACTW}, {v(T,4)} offset:16384"); I(f"ds_write_b128 v{vACTW}, {v(T+4,4)} offset:17408")
    bar()
    dma(S2,pb,524288,512,128,0,128,"fb2",rowS=256)
    stamp()
    E.wait_vm("fb1"); bar(False)
    gemm(0,8,tr1,0,actr,16384,True)
    E.wait_vm("fb2"); bar(False)
    if next1: next1()
    gemm(8,8,tr2,0,actr,16384,False)

def resets(local_sc,remote=True):
    for i in range(4): I(f"v_mov_b32 v{T+8+i}, -1")
    R4=v(T+8,4)
    I(f"s_lshl_b32 s{sT0}, s{sWG}, 14"); I(f"s_lshl_b32 s{sT1}, s{sWv}, 11"); I(f"s_add_u32 s{sT0}, s{sT0}, s{sT1}")
    I(f"s_add_u32 s{sT1}, s{sT0}, {E6}")
    for sr in (sT0,sT1):
        for j in range(2): I(f"buffer_store_dwordx4 {R4}, v{vL16}, {srd(sWS)}, s{sr} offen offset:{1024*j}{local_sc}","rst")
    if remote:
        I(f"s_lshl_b32 s{sT0}, s{sB}, 2"); I(f"s_add_u32 s{sT0}, s{sT0}, s{sS}"); I(f"s_lshl_b32 s{sT0}, s{sT0}, 5"); I(f"s_add_u32 s{sT0}, s{sT0}, s{sR}")
        I(f"s_lshl_b32 s{sT0}, s{sT0}, 13"); I(f"s_lshl_b32 s{sT1}, s{sWv}, 10"); I(f"s_add_u32 s{sT0}, s{sT0}, s{sT1}"); I(f"s_add_u32 s{sT0}, s{sT0}, {KV}")
        I(f"buffer_store_dwordx4 {R4}, v{vL16}, {srd(sWS)}, s{sT0} offen sc1","rst")
        I(f"s_lshr_b32 s{sT0}, s{sWv}, 2"); I(f"s_lshl_b32 s{sT0}, s{sT0}, 20"); I(f"s_and_b32 s{sT1}, s{sWv}, 3"); I(f"s_lshl_b32 s{sT1}, s{sT1}, 10")
        I(f"s_add_u32 s{sT0}, s{sT0}, s{sT1}"); I(f"s_lshl_b32 s{sT1}, s{sWG}, 12"); I(f"s_add_u32 s{sT0}, s{sT0}, s{sT1}"); I(f"s_add_u32 s{sT0}, s{sT0}, {E3}")
        I(f"buffer_store_dwordx4 {R4}, v{vL16}, {srd(sWS)}, s{sT0} offen sc1","rst")
def pub(insts):
    l1=E.newlab(); l2=E.newlab()
    I(f"s_cmp_eq_u32 s{sFAST}, 0"); I(f"s_cbranch_scc1 {l1}"); tb=E.mark(); E.cond+=1
    for x in insts: I(x)
    I(f"s_branch {l2}"); tb2=E.mark(); E.join(l1,tb)
    for x in insts: I(x+" sc1")
    E.cond-=1; E.join(l2,tb2)
def prefetch(p,nbytes,dst):
    share=nbytes//32; setW(p,nbytes)
    I(f"s_and_b32 s{sT0}, s{sWG}, 31"); I(f"s_mul_i32 s{sT0}, s{sT0}, {share}")
    I(f"v_lshlrev_b32 v{vT0}, 7, v0")
    I(f"v_cmp_gt_u32 vcc, {share}, v{vT0}"); I(f"v_mov_b32 v{vT1}, 0x7ffffff0"); I(f"v_cndmask_b32 v{vT0}, v{vT1}, v{vT0}, vcc")
    I(f"buffer_load_dword v{dst}, v{vT0}, {srd(sW)}, s{sT0} offen","pf")

I(f"s_load_dwordx16 s[8:23], s[0:1], 0"); I("s_load_dwordx8 s[24:31], s[0:1], 64"); I("s_load_dwordx2 s[32:33], s[0:1], 96")
I("s_cmp_ge_u32 s2, 256"); I("s_cbranch_scc1 L_end")
stamp()
I(f"s_and_b32 s{sWG}, s2, 7"); I(f"s_lshl_b32 s{sWG}, s{sWG}, 5"); I(f"s_lshr_b32 s{sT0}, s2, 3"); I(f"s_or_b32 s{sWG}, s{sWG}, s{sT0}")
I(f"s_and_b32 s{sS}, s{sWG}, 3"); I(f"s_lshr_b32 s{sTile}, s{sWG}, 2"); I(f"s_lshr_b32 s{sB}, s{sWG}, 7"); I(f"s_and_b32 s{sR}, s{sTile}, 31")
I(f"s_getreg_b32 s{sXCC}, hwreg(HW_REG_XCC_ID)"); I(f"s_and_b32 s{sXCC}, s{sXCC}, 15"); I(f"s_or_b32 s{sXCC}, s{sXCC}, 16")
I(f"v_lshrrev_b32 v{vT0}, 6, v0"); I(f"v_and_b32 v{vLANE}, 63, v0")
I(f"v_readfirstlane_b32 s{sWv}, v{vT0}")
I(f"v_lshlrev_b32 v{vL16}, 4, v{vLANE}")
I(f"v_and_b32 v{vT1}, 7, v{vLANE}"); I(f"v_bfe_u32 v{vT2}, v{vLANE}, 4, 1"); I(f"v_lshlrev_b32 v{vT3}, 2, v{vT2}")
I(f"v_xor_b32 v{vT1}, v{vT1}, v{vT3}"); I(f"v_lshlrev_b32 v{vC16}, 4, v{vT1}")
I(f"v_and_b32 v{vT1}, 31, v{vLANE}"); I(f"v_lshlrev_b32 v{vT1}, 9, v{vT1}"); I(f"v_lshl_or_b32 v{vT1}, v{vT0}, 6, v{vT1}")
I(f"v_lshrrev_b32 v{vT3}, 5, v{vLANE}"); I(f"v_lshl_or_b32 v{vXOFF}, v{vT3}, 3, v{vT1}")
I(f"v_mov_b32 v{T}, -1"); I(f"v_mov_b32 v{T+1}, -1"); I(f"v_mov_b32 v{T+2}, -1"); I(f"v_mov_b32 v{T+3}, -1")
I("s_waitcnt lgkmcnt(0)")
for sr,p,n in ((sWS,pWS,0x10000000),(sD,pDBG,256)):
    I(f"s_mov_b32 s{sr}, s{p}"); I(f"s_mov_b32 s{sr+1}, s{p+1}"); I(f"s_mov_b32 s{sr+2}, {n}"); I(f"s_mov_b32 s{sr+3}, 0x20000")
I(f"s_mul_i32 s{sT0}, s{sB}, 512000")
for sr,p in ((sX,pX),(sO,pOUT)):
    I(f"s_add_u32 s{sr}, s{p}, s{sT0}"); I(f"s_addc_u32 s{sr+1}, s{p+1}, 0"); I(f"s_mov_b32 s{sr+2}, 512000"); I(f"s_mov_b32 s{sr+3}, 0x20000")
I(f"s_mov_b32 s{sW+3}, 0x20000")
I(f"s_lshl_b32 s{sT3}, s{sR}, 14")
for g in range(4): I(f"buffer_load_dwordx2 {v(ACC+2*g,2)}, v{vXOFF}, {srd(sX)}, s{sT3} offen offset:{16*g}","x")
dma(SA,pW1a,524288,2048,0,0,128,"fa1",colS=512)
dma(SB,pW1a,524288,2048,128,0,128,"fa2",colS=512)
prefetch(pW1b,524288,250)
resets("")
prefetch(pQKV,393216,251); prefetch(pWO,131072,252); prefetch(pPW1,262144,253); prefetch(pPW2,131072,254)
I(f"v_lshrrev_b32 v{vT3}, 5, v{vLANE}"); I(f"v_bfe_u32 v{vT1}, v{vLANE}, 2, 2"); I(f"v_lshl_or_b32 v{vT3}, v{vT3}, 2, v{vT1}")
I(f"v_lshlrev_b32 v{vTRA}, 7, v{vT3}")
I(f"v_and_b32 v{vT2}, 3, v{vLANE}"); I(f"v_lshl_or_b32 v{vTRA}, v{vT2}, 3, v{vTRA}")
I(f"v_bfe_u32 v{vT2}, v{vLANE}, 3, 1"); I(f"v_lshl_or_b32 v{vTRA}, v{vT2}, 6, v{vTRA}")
vTRP=255
I(f"v_mov_b32 v{vTRP}, v{vTRA}")
I(f"v_bfe_u32 v{vT2}, v{vLANE}, 4, 1"); I(f"v_lshl_or_b32 v{vTRA}, v{vT2}, 5, v{vTRA}")
I(f"s_and_b32 s{sT0}, s{sWv}, 1"); I(f"s_lshl_b32 s{sT0}, s{sT0}, 6"); I(f"s_lshr_b32 s{sT1}, s{sWv}, 1"); I(f"s_lshl_b32 s{sT1}, s{sT1}, 14")
I(f"v_xor_b32 v{vTRA}, s{sT0}, v{vTRA}"); I(f"v_add_u32 v{vTRA}, s{sT1}, v{vTRA}"); I(f"v_add_u32 v{vTRB}, 0x10000, v{vTRA}")
I(f"v_mul_u32_u24 v{vT1}, 0x8020, v{vT2}"); I(f"v_or_b32 v{vTRP}, v{vTRP}, v{vT1}")
I(f"s_and_b32 s{sT0}, s{sWv}, 3"); I(f"s_lshl_b32 s{sT0}, s{sT0}, 5"); I(f"v_xor_b32 v{vTRP}, s{sT0}, v{vTRP}")
I(f"v_add_u32 v{vACTR}, {ACT}, v{vL16}"); I(f"s_lshl_b32 s{sT0}, s{sWv}, 11"); I(f"v_add_u32 v{vACTW}, s{sT0}, v{vACTR}")
I(f"v_lshlrev_b32 v{vSTR}, 2, v{vLANE}"); I(f"v_add_u32 v{vSTR}, {STATS}, v{vSTR}"); I(f"s_lshl_b32 s{sT0}, s{sWv}, 8"); I(f"v_add_u32 v{vSTW}, s{sT0}, v{vSTR}")
E.wait_vm("x")
for i in range(8):
    I(f"v_lshlrev_b32 v{X+2*i}, 16, v{ACC+i}"); I(f"v_and_b32 v{X+2*i+1}, 0xffff0000, v{ACC+i}")
stamp()
ln_to_act()
def qkv1(): dma(SA,pQKV,393216,1536,0,0,512,"q1",kind="q",colS=128)
def flag_store(st=True):
    lab=E.newlab(); I(f"s_cmp_lg_u32 s{sWv}, 7"); I(f"s_cbranch_scc1 {lab}"); tb=E.mark(); E.cond+=1
    I(f"v_mov_b32 v{vT0}, s{sXCC}"); I(f"v_mov_b32 v{vT1}, s{sWG}"); I("s_mov_b64 exec, 1")
    I(f"buffer_store_byte v{vT0}, v{vT1}, {srd(sD)}, 0 offen sc1"); I("s_mov_b64 exec, -1")
    E.cond-=1; E.join(lab,tb)
    if st: stamp()
ffn(pW1b,"fa1","rst",SA,vTRA,SB,vTRB,qkv1,flag_store)
stamp()
I(f"v_and_b32 v{vT1}, 31, v{vLANE}"); I(f"v_lshlrev_b32 v{vT1}, 2, v{vT1}"); I(f"s_lshl_b32 s{sT0}, s{sB}, 7")
poll(lambda: I(f"buffer_load_dword v{vT2}, v{vT1}, {srd(sD)}, s{sT0} offen sc1"),[vT2],"0x10101010")
I(f"v_readlane_b32 s{sT0}, v{vT2}, s{sR}"); I(f"s_and_b32 s{sT0}, s{sT0}, 0x1f1f1f1f"); I(f"s_mul_i32 s{sT1}, s{sXCC}, 0x01010101")
I(f"s_cmp_eq_u32 s{sT0}, s{sT1}"); I(f"s_cselect_b32 s{sFAST}, 1, 0")
lf=E.newlab(); I(f"s_cbranch_scc1 {lf}"); tb=E.mark(); E.cond+=1
resets(" sc1",False); E.wait_vm0(); I("s_barrier")
I(f"s_or_b32 s{sXCC}, s{sXCC}, 32"); flag_store(False)
I(f"v_mov_b32 v{vT1}, s{sTile}"); I(f"v_lshlrev_b32 v{vT1}, 2, v{vT1}")
poll(lambda: I(f"buffer_load_dword v{vT2}, v{vT1}, {srd(sD)}, 0 offen sc1"),[vT2],"0x20202020")
E.cond-=1; E.join(lf,tb)
stamp()
exch_partial(E1,False)
bar(False)
dma(SB,pQKV,393216,1536,128,0,512,"q2",kind="q",colS=128)
exch_partial2(E1,False)
stamp()
dump(X)
ln_to_act()
bar()
def qkv_half(h):
    l_sw=E.newlab(); l_end=E.newlab()
    I(f"s_cmp_ge_u32 s{sWv}, 6"); I(f"s_cbranch_scc1 {l_end}"); tb0=E.mark()
    I(f"s_cmp_ge_u32 s{sWv}, 4"); I(f"s_cbranch_scc1 {l_sw}"); tb1=E.mark()
    gemm(8*h,8,vTRB if h else vTRA,0,actr,0,h==0)
    I(f"s_branch {l_end}"); tb2=E.mark()
    E.join(l_sw,tb1)
    gemm(8*h,8,vTRB if h else vTRA,0,actr,0,h==0,swap=True)
    E.join(l_end,tb2)
qkv_half(0); qkv_half(1)
pack16(ACC,T)
l1=E.newlab(); l2=E.newlab()
I(f"s_cmp_ge_u32 s{sWv}, 2"); I(f"s_cbranch_scc1 {l1}"); tb=E.mark()
I(f"ds_write_b128 v{vACTW}, {v(T,4)} offset:{QF-ACT}"); I(f"ds_write_b128 v{vACTW}, {v(T+4,4)} offset:{QF-ACT+1024}")
I(f"s_branch {l2}"); tb2=E.mark()
E.join(l1,tb); E.cond+=1
I(f"s_cmp_ge_u32 s{sWv}, 6"); I(f"s_cbranch_scc1 {l2}")
sKV=34
I(f"s_lshl_b32 s{sT0}, s{sB}, 2"); I(f"s_add_u32 s{sT0}, s{sT0}, s{sS}"); I(f"s_lshl_b32 s{sT0}, s{sT0}, 5"); I(f"s_add_u32 s{sT0}, s{sT0}, s{sR}")
I(f"s_lshl_b32 s{sT0}, s{sT0}, 13"); I(f"s_lshl_b32 s{sT1}, s{sWv}, 11"); I(f"s_add_u32 s{sT0}, s{sT0}, s{sT1}"); I(f"s_add_u32 s{sT0}, s{sT0}, {KV-4096}")
I(f"buffer_store_dwordx4 {v(T,4)}, v{vL16}, {srd(sWS)}, s{sT0} offen sc1")
I(f"buffer_store_dwordx4 {v(T+4,4)}, v{vL16}, {srd(sWS)}, s{sT0} offen offset:1024 sc1")
E.cond-=1; E.join(l2,tb)
bar()
stamp()
dma(SA,pWO,131072,512,0,0,128,"o1")
prefetch(pW2a,524288,T+13); prefetch(pW2b,524288,T+14)
KF=G; VF=G+64; SS=G+128; QR=ACC
assert SS+64<=256
vTRPs=T+15
I(f"v_mov_b32 v{vTRPs}, v{vTRP}")
for ks in range(4): I(f"ds_read_b128 {v(QR+4*ks,4)}, v{vACTR} offset:{QF-ACT+ks*1024}")
I(f"s_lshl_b32 s{sT0}, s{sB}, 2"); I(f"s_add_u32 s{sT0}, s{sT0}, s{sS}"); I(f"s_lshl_b32 s{sT0}, s{sT0}, 18")
I(f"s_lshl_b32 s{sT1}, s{sWv}, 15"); I(f"s_add_u32 s{sT0}, s{sT0}, s{sT1}"); I(f"s_add_u32 s{sKV}, s{sT0}, {KV}")
I(f"v_and_b32 v{vT1}, 31, v{vLANE}"); I(f"v_lshlrev_b32 v{vT1}, 10, v{vT1}"); I(f"v_lshrrev_b32 v{vT2}, 5, v{vLANE}"); I(f"v_lshl_or_b32 v{vT1}, v{vT2}, 9, v{vT1}")
poll(lambda: I(f"buffer_load_dword v{vT2}, v{vT1}, {srd(sWS)}, s{sKV} offen offset:508 sc1"),[vT2])
stamp()
def kvloads():
    for part,base in ((0,KF),(1,VF)):
        for j in range(4):
            I(f"s_add_u32 s{sT0}, s{sKV}, {j*8192+part*4096}")
            for f in range(4): I(f"buffer_load_dwordx4 {v(base+16*j+4*f,4)}, v{vL16}, {srd(sWS)}, s{sT0} offen offset:{1024*f} sc1")
poll(kvloads,list(range(KF,KF+128)))
stamp()
I("s_waitcnt lgkmcnt(0)")
for j in range(4):
    for ks in range(4):
        I(f"v_mfma_f32_32x32x16_bf16 {v(SS+16*j,16)}, {v(KF+16*j+4*ks,4)}, {v(QR+4*ks,4)}, {'0' if ks==0 else v(SS+16*j,16)}")
lab=E.newlab(); E.nop(12)
I(f"s_cmp_lg_u32 s{sWv}, 7"); I(f"s_cbranch_scc1 {lab}"); tb=E.mark()
for r in range(4,16): I(f"v_mov_b32 v{SS+48+r}, 0xff800000")
E.join(lab,tb)
I(f"v_max3_f32 v{vT0}, v{SS}, v{SS+1}, v{SS+2}"); I(f"v_max_f32 v{vT1}, v{SS+3}, v{SS+4}")
for i in range(5,63,4):
    I(f"v_max3_f32 v{vT0}, v{vT0}, v{SS+i}, v{SS+i+1}")
    if i+3<64: I(f"v_max3_f32 v{vT1}, v{vT1}, v{SS+i+2}, v{SS+i+3}")
I(f"v_max3_f32 v{vT0}, v{vT0}, v{vT1}, v{SS+63}")
I(f"v_mov_b32 v{vT1}, v{vT0}"); I(f"v_permlane32_swap_b32 v{vT0}, v{vT1}"); I(f"v_max_f32 v{vT0}, v{vT0}, v{vT1}")
CS="0x3e38aa3b"
setC(CS)
I(f"v_mul_f32 v{vT2}, s{sC}, v{vT0}")
for i in range(0,64,2): I(f"v_pk_fma_f32 {v(SS+i,2)}, {v(SS+i,2)}, s[{sC}:{sC+1}], {v(vT2,2)} op_sel_hi:[1,1,0] neg_lo:[0,0,1] neg_hi:[0,0,1]")
PF=KF; OO=KF+32
for j in range(4):
    for i in range(16): I(f"v_exp_f32 v{SS+16*j+i}, v{SS+16*j+i}")
    for i in range(8): I(f"v_cvt_pk_bf16_f32 v{PF+8*j+i}, v{SS+16*j+2*i}, v{SS+16*j+2*i+1}")
    for dt in range(2):
        for u in range(2):
            I(f"v_mfma_f32_32x32x16_bf16 {v(OO+16*dt,16)}, {v(VF+16*j+8*dt+4*u,4)}, {v(PF+8*j+4*u,4)}, {'0' if (j==0 and u==0) else v(OO+16*dt,16)}")
I(f"v_pk_add_f32 {v(T,2)}, {v(SS,2)}, {v(SS+2,2)}"); I(f"v_pk_add_f32 {v(T+2,2)}, {v(SS+4,2)}, {v(SS+6,2)}")
for i in range(8,64,4):
    I(f"v_pk_add_f32 {v(T,2)}, {v(T,2)}, {v(SS+i,2)}"); I(f"v_pk_add_f32 {v(T+2,2)}, {v(T+2,2)}, {v(SS+i+2,2)}")
I(f"v_pk_add_f32 {v(T,2)}, {v(T,2)}, {v(T+2,2)}"); I(f"v_add_f32 v{vT1}, v{T}, v{T+1}")
I(f"v_mov_b32 v{vT3}, v{vT1}"); I(f"v_permlane32_swap_b32 v{vT1}, v{vT3}"); I(f"v_add_f32 v{vT1}, v{vT1}, v{vT3}")
I(f"v_cmp_gt_u32 vcc, 32, v{vLANE}"); I(f"v_cndmask_b32 v{vT1}, v{vT1}, v{vT2}, vcc")
I(f"ds_write_b32 v{vSTW}, v{vT1} offset:{MST-STATS}")
I(f"v_mov_b32 v{vTRP}, v{vTRPs}")
I(f"s_lshl_b32 s{sT0}, s{sWv}, 13"); I(f"s_add_u32 s{sT0}, s{sT0}, {SB}"); I(f"v_add_u32 v{vT0}, s{sT0}, v{vL16}")
for q in range(8): I(f"ds_write_b128 v{vT0}, {v(OO+4*q,4)} offset:{q*1024}")
bar()
stamp()
lg=E.newlab(); le=E.newlab()
I(f"s_cmp_ge_u32 s{sWv}, 4"); I(f"s_cbranch_scc1 {lg}"); tb=E.mark(); E.cond+=1
I(f"v_and_b32 v{vT0}, 31, v{vLANE}"); I(f"v_lshlrev_b32 v{vT0}, 2, v{vT0}"); I(f"v_add_u32 v{vT0}, {MST}, v{vT0}"); I(f"v_add_u32 v{vT1}, 128, v{vT0}")
MM=T; LL=T+8
for i in range(4): I(f"ds_read2st64_b32 {v(MM+2*i,2)}, v{vT0} offset0:{2*i} offset1:{2*i+1}")
for i in range(4): I(f"ds_read2st64_b32 {v(LL+2*i,2)}, v{vT1} offset0:{2*i} offset1:{2*i+1}")
I(f"s_lshl_b32 s{sT0}, s{sWv}, 11"); I(f"s_add_u32 s{sT0}, s{sT0}, {SB}"); I(f"v_add_u32 v{vT2}, s{sT0}, v{vL16}")
for w in range(8):
    for i in range(2): I(f"ds_read_b128 {v(G+8*w+4*i,4)}, v{vT2} offset:{w*8192+i*1024}")
I("s_waitcnt lgkmcnt(15)")
I(f"v_max3_f32 v{vT0}, v{MM}, v{MM+1}, v{MM+2}"); I(f"v_max3_f32 v{vT0}, v{vT0}, v{MM+3}, v{MM+4}"); I(f"v_max3_f32 v{vT0}, v{vT0}, v{MM+5}, v{MM+6}"); I(f"v_max_f32 v{vT0}, v{vT0}, v{MM+7}")
for i in range(8): I(f"v_sub_f32 v{MM+i}, v{MM+i}, v{vT0}")
for i in range(8): I(f"v_exp_f32 v{MM+i}, v{MM+i}")
I(f"v_mul_f32 v{vT1}, v{MM}, v{LL}")
for i in range(1,8): I(f"v_fmac_f32 v{vT1}, v{MM+i}, v{LL+i}")
I(f"v_rcp_f32 v{vT1}, v{vT1}")
for i in range(8): I(f"v_mul_f32 v{MM+i}, v{MM+i}, v{vT1}")
I("s_waitcnt lgkmcnt(0)")
for w in range(8):
    sel="op_sel:[0,1,0] op_sel_hi:[1,1,1]" if w&1 else "op_sel_hi:[1,0,1]"
    for i in range(4):
        if w==0: I(f"v_pk_mul_f32 {v(ACC+2*i,2)}, {v(G+2*i,2)}, {v(MM,2)} op_sel_hi:[1,0]")
        else: I(f"v_pk_fma_f32 {v(ACC+2*i,2)}, {v(G+8*w+2*i,2)}, {v(MM+(w&~1),2)}, {v(ACC+2*i,2)} {sel}")
for i in range(4): I(f"v_cvt_pk_bf16_f32 v{LL+i}, v{ACC+2*i}, v{ACC+2*i+1}")
I(f"s_lshl_b32 s{sT0}, s{sWG}, 12"); I(f"s_lshl_b32 s{sT1}, s{sWv}, 10"); I(f"s_add_u32 s{sT0}, s{sT0}, s{sT1}"); I(f"s_add_u32 s{sT0}, s{sT0}, {E3}")
pub([f"buffer_store_dwordx4 {v(LL,4)}, v{vL16}, {srd(sWS)}, s{sT0} offen"])
I(f"s_lshl_b32 s{sT0}, s{sS}, 12"); I(f"s_add_u32 s{sT0}, s{sT0}, s{sT1}"); I(f"v_add_u32 v{vT0}, s{sT0}, v{vACTR}")
I(f"ds_write_b128 v{vT0}, {v(LL,4)}")
I("s_waitcnt lgkmcnt(0)"); I("s_barrier")
I(f"s_branch {le}"); tb2=E.mark()
E.join(lg,tb)
I("s_barrier")
E.cond-=1; E.join(le,tb2)
dma(SB,pWO,131072,512,128,0,128,"o2")
lg=E.newlab()
I(f"s_cmp_lt_u32 s{sWv}, 4"); I(f"s_cbranch_scc1 {lg}"); tb=E.mark(); E.cond+=1
I(f"s_lshl_b32 s{sT0}, s{sWG}, 12"); I(f"s_lshl_b32 s{sT1}, s{sWv}, 10"); I(f"s_add_u32 s{sT0}, s{sT0}, s{sT1}"); I(f"s_add_u32 s{sT0}, s{sT0}, {E3-4096}")
I(f"s_xor_b32 s{sT1}, s{sT0}, 0x1000"); I(f"s_xor_b32 s{sT2}, s{sT0}, 0x2000"); I(f"s_xor_b32 s{sT3}, s{sT0}, 0x3000")
def e3loads():
    for k,sr in enumerate((sT1,sT2,sT3)): I(f"buffer_load_dwordx4 {v(G+4*k,4)}, v{vL16}, {srd(sWS)}, s{sr} offen sc1")
poll(e3loads,list(range(G,G+12)))
for k,sr in enumerate((sT1,sT2,sT3)):
    I(f"s_and_b32 s{sr}, s{sr}, 0x3fff"); I(f"v_add_u32 v{vT0}, s{sr}, v{vACTR}"); I(f"ds_write_b128 v{vT0}, {v(G+4*k,4)}")
E.cond-=1; E.join(lg,tb)
E.wait_vm("o1"); bar()
stamp()
gemm(0,8,vTRA,0,actr,0,True)
E.wait_vm("o2"); bar(False)
dma(SA,pPW1,262144,1024,0,0,512,"p1",kind="p",colS=128)
gemm(8,8,vTRB,0,actr,0,False)
for i in range(8): I(f"v_pk_add_f32 {v(X+2*i,2)}, {v(X+2*i,2)}, {v(ACC+2*i,2)}")
dump(X)
ln_to_act(lambda: dma(SB,pPW2,131072,512,0,0,128,"c1"))
DWR=G+128
I(f"s_and_b32 s{sT0}, s{sWv}, 1"); I(f"s_lshl_b32 s{sT0}, s{sT0}, 6"); I(f"v_or_b32 v{vT0}, s{sT0}, v{vLANE}")
I(f"v_lshrrev_b32 v{vT1}, 3, v{vT0}"); I(f"v_lshlrev_b32 v{vT1}, 5, v{vT1}")
I(f"v_bfe_u32 v{vT2}, v{vT0}, 1, 1"); I(f"v_lshl_or_b32 v{vT1}, v{vT2}, 4, v{vT1}")
I(f"v_bfe_u32 v{vT2}, v{vT0}, 2, 1"); I(f"v_lshl_or_b32 v{vT1}, v{vT2}, 3, v{vT1}")
I(f"v_and_b32 v{vT2}, 1, v{vT0}"); I(f"v_lshl_or_b32 v{vT1}, v{vT2}, 2, v{vT1}")
setW(pDW,31*512)
for i in range(31):
    if i%8==0: I(f"s_movk_i32 s{sT0}, {i*512}")
    I(f"buffer_load_dword v{DWR+i}, v{vT1}, {srd(sW)}, s{sT0} offen offset:{(i%8)*512}","dw")
E.wait_vm("p1"); bar()
stamp()
lg=E.newlab()
I(f"s_cmp_ge_u32 s{sWv}, 4"); I(f"s_cbranch_scc1 {lg}"); tb=E.mark(); E.cond+=1
gemm(0,16,vTRP,0,actr,0,True)
setC(NLOG2E)
for i in range(0,8,2): I(f"v_pk_mul_f32 {v(T+i,2)}, {v(ACC+8+i,2)}, s[{sC}:{sC+1}]")
for i in range(8): I(f"v_exp_f32 v{T+i}, v{T+i}")
for i in range(0,8,2): I(f"v_pk_add_f32 {v(T+i,2)}, {v(T+i,2)}, 1.0 op_sel_hi:[1,0]")
for i in range(8): I(f"v_rcp_f32 v{T+i}, v{T+i}")
for i in range(0,8,2): I(f"v_pk_mul_f32 {v(T+i,2)}, {v(ACC+i,2)}, {v(T+i,2)}")
for i in range(4): I(f"v_cvt_pk_bf16_f32 v{T+i}, v{T+2*i}, v{T+2*i+1}")
I(f"s_lshl_b32 s{sT0}, s{sR}, 5"); I(f"v_and_b32 v{vT0}, 31, v{vLANE}"); I(f"v_add_u32 v{vT0}, s{sT0}, v{vT0}"); I(f"v_cmp_gt_u32 vcc, 1000, v{vT0}")
for i in range(4): I(f"v_cndmask_b32 v{T+i}, 0, v{T+i}, vcc")
I(f"s_lshl_b32 s{sT0}, s{sWG}, 12"); I(f"s_lshl_b32 s{sT1}, s{sWv}, 10"); I(f"s_add_u32 s{sT0}, s{sT0}, s{sT1}"); I(f"s_add_u32 s{sT0}, s{sT0}, {E4}")
I(f"buffer_store_dwordx4 {v(T,4)}, v{vL16}, {srd(sWS)}, s{sT0} offen sc1")
E.cond-=1; E.join(lg,tb)
bar(False)
dma(SA,pPW2,131072,512,128,0,128,"c2")
WE=G; WOd=G+32
sPL,sPH=sT2,sT3
E.wait_vm("dw")
I(f"v_mov_b32 v{DWR+31}, 0")
I(f"s_mov_b32 s34, 0x05040100"); I(f"s_mov_b32 s35, 0x07060302")
for m in range(16):
    for c in range(2):
        I(f"v_perm_b32 v{WE+2*m+c}, v{DWR+2*m+1}, v{DWR+2*m}, s{34+c}")
        I(f"v_perm_b32 v{WOd+2*m+c}, v{DWR+2*m}, v{DWR+(2*m-1 if m else 31)}, s{34+c}")
stamp()
HR=G+64
I(f"s_lshl_b32 s{sT0}, s{sTile}, 14"); I(f"s_lshl_b32 s{sT1}, s{sWv}, 11"); I(f"s_add_u32 s{sT0}, s{sT0}, s{sT1}"); I(f"s_add_u32 s{sT0}, s{sT0}, {E4}")
I(f"s_sub_u32 s{sT1}, s{sT0}, 0x4000")
I(f"v_xor_b32 v{vT1}, 0x100, v{vL16}"); I(f"v_bfe_u32 v{vT2}, v{vLANE}, 4, 1"); I(f"v_lshl_or_b32 v{vT1}, v{vT2}, 15, v{vT1}")
I(f"v_mul_u32_u24 v{vT3}, 31, v{vT2}"); I(f"v_cmp_eq_u32 vcc, s{sR}, v{vT3}"); I(f"v_mov_b32 v{vT3}, 0x7ffffff0"); I(f"v_cndmask_b32 v{vT1}, v{vT1}, v{vT3}, vcc")
def e4loads():
    for i in range(2): I(f"buffer_load_dwordx4 {v(HR+4*i,4)}, v{vL16}, {srd(sWS)}, s{sT0} offen offset:{1024*i} sc1")
    for i in range(2): I(f"buffer_load_dwordx4 {v(HR+8+4*i,4)}, v{vT1}, {srd(sWS)}, s{sT1} offen offset:{1024*i} sc1")
poll(e4loads,list(range(HR,HR+16)))
stamp()
I(f"v_lshrrev_b32 v{vT0}, 5, v{vLANE}"); I(f"s_lshl_b32 s{sT0}, s{sWv}, 2"); I(f"v_or_b32 v{vT0}, s{sT0}, v{vT0}")
I(f"v_and_b32 v{vT1}, 7, v{vLANE}"); I(f"v_xor_b32 v{vT0}, v{vT0}, v{vT1}"); I(f"v_lshlrev_b32 v{vT0}, 4, v{vT0}"); I(f"v_add_u32 v{vT0}, {HIM}, v{vT0}")
I(f"v_and_b32 v{vT1}, 31, v{vLANE}"); I(f"v_lshl_add_u32 v{vT1}, v{vT1}, 9, v{vT0}")
I(f"v_xor_b32 v{vT3}, 32, v{vT1}")
I(f"ds_write_b128 v{vT1}, {v(HR,4)} offset:8192"); I(f"ds_write_b128 v{vT3}, {v(HR+4,4)} offset:8192")
I(f"v_lshl_add_u32 v{vT1}, v{vT2}, 14, v{vT1}")
I(f"v_xor_b32 v{vT3}, 32, v{vT1}")
I(f"ds_write_b128 v{vT1}, {v(HR+8,4)}"); I(f"ds_write_b128 v{vT3}, {v(HR+12,4)}")
AD=T
I(f"s_and_b32 s{sT0}, s{sWv}, 1"); I(f"s_lshl_b32 s{sT0}, s{sT0}, 8"); I(f"v_lshlrev_b32 v{vT0}, 2, v{vLANE}"); I(f"v_or_b32 v{vT0}, s{sT0}, v{vT0}")
I(f"s_lshr_b32 s{sT1}, s{sWv}, 1"); I(f"s_lshl_b32 s{sT1}, s{sT1}, 12"); I(f"s_add_u32 s{sT1}, s{sT1}, {HIM}"); I(f"v_add_u32 v{vT1}, s{sT1}, v{vT0}")
for k in range(8): I(f"v_xor_b32 v{AD+k}, {16*k}, v{vT1}")
bar()
RW=G+64; DP=G+112
def rw(k):
    if k<32: return RW+2*((k&7)+8*(k>>4))+((k>>3)&1)
    return RW+k
for k in list(range(8))+list(range(16,24)): I(f"ds_read2st64_b32 {v(rw(k),2)}, v{AD+(k&7)} offset0:{2*k} offset1:{2*k+16}")
for k in range(32,40): I(f"ds_read_b32 v{rw(k)}, v{AD+(k&7)} offset:{512*k}")
for i in range(16): I(f"v_mov_b32 v{ACC+i}, 0")
I("s_waitcnt lgkmcnt(0)")
I("s_barrier")
for k in range(20):
    for c in range(2): I(f"v_perm_b32 v{DP+2*k+c}, v{rw(2*k+1)}, v{rw(2*k)}, s{34+c}")
for m in range(16):
    for u in range(8):
        for c in range(2):
            if u&1: I(f"v_dot2c_f32_bf16 v{ACC+2*u+c}, v{DP+2*((u+1)//2+m)+c}, v{WE+2*m+c}")
            else:   I(f"v_dot2c_f32_bf16 v{ACC+2*u+c}, v{DP+2*(u//2+m)+c}, v{WOd+2*m+c}")
setC(NLOG2E); silu(ACC,16,G+64); pack16(ACC,G+64)
I(f"v_lshrrev_b32 v{vT1}, 4, v{vT0}")
I(f"v_and_b32 v{vT2}, 7, v{vT1}"); I(f"v_lshlrev_b32 v{vT2}, 4, v{vT2}"); I(f"v_lshl_or_b32 v{vT2}, v{vT1}, 9, v{vT2}")
I(f"v_and_b32 v{vT3}, 12, v{vT0}"); I(f"v_or_b32 v{vT2}, v{vT2}, v{vT3}")
I(f"s_lshr_b32 s{sT1}, s{sWv}, 1"); I(f"s_lshl_b32 s{sT1}, s{sT1}, 7"); I(f"s_add_u32 s{sT1}, s{sT1}, {ACT}"); I(f"v_add_u32 v{vT2}, s{sT1}, v{vT2}")
for u in range(8):
    I(f"v_xor_b32 v{AD+u}, {16*u}, v{vT2}"); I(f"ds_write_b32 v{AD+u}, v{G+64+u}")
RA=T+8
I(f"v_lshrrev_b32 v{vT1}, 5, v{vLANE}"); I(f"v_lshlrev_b32 v{vT1}, 4, v{vT1}"); I(f"v_xor_b32 v{vT1}, v{vT1}, v{vACTR}")
for q in range(4): I(f"v_xor_b32 v{RA+q}, {32*q}, v{vT1}")
bar()
stamp()
ra=lambda ks: RA+(ks&3)
gemm(0,8,vTRB,0,ra,0,True)
bar(False)
dma(SB,pW2a,524288,2048,0,0,128,"ga1",colS=512)
gemm(8,8,vTRA,0,ra,0,False)
for i in range(8): I(f"v_pk_add_f32 {v(X+2*i,2)}, {v(X+2*i,2)}, {v(ACC+2*i,2)}")
dump(X)
ln_to_act(lambda: dma(SA,pW2a,524288,2048,128,0,128,"ga2",colS=512))
stamp()
ffn(pW2b,"ga1","ga2",SB,vTRB,SA,vTRA)
stamp()
exch_partial(E6,True)
exch_partial2(E6,True)
stamp()
bar(False)
ln_stats(); ln_apply(T); pack16(T,T)
I(f"v_bfe_u32 v{vT1}, v{vLANE}, 3, 2"); I(f"v_cmp_eq_u32 vcc, s{sS}, v{vT1}"); I(f"v_mov_b32 v{vT1}, 0x7ffffff0"); I(f"v_cndmask_b32 v{vT1}, v{vT1}, v{vXOFF}, vcc")
I(f"s_lshl_b32 s{sT3}, s{sR}, 14")
for g in range(4): I(f"buffer_store_dwordx2 {v(T+2*g,2)}, v{vT1}, {srd(sO)}, s{sT3} offen offset:{16*g}")
stamp()
if DBG&1:
    I(f"s_lshl_b32 s{sT0}, s{sWG}, 10"); I(f"s_lshl_b32 s{sT1}, s{sWv}, 7"); I(f"s_add_u32 s{sT0}, s{sT0}, s{sT1}"); I(f"s_add_u32 s{sT0}, s{sT0}, {TS}")
    I(f"v_mov_b32 v{vT1}, 0")
    for i in range(nts[0]):
        I(f"v_mov_b32 v{vT0}, s{sTS+i}"); I(f"buffer_store_dword v{vT0}, v{vT1}, {srd(sWS)}, s{sT0} offen offset:{4*i}")
    assert sTS+nts[0]<=100, nts
E.label("L_end"); I("s_endpgm")

hdr=open("standalone__conformer_family_zipformer__speech.s.ref").read().split("; Override")[0]
out=hdr+"; @launch grid=(256,1,1) block=(512,1,1) lds=163840\n"
out+=f'.amdgcn_target "amdgcn-amd-amdhsa--gfx950"\n.text\n.globl {KN}\n.p2align 8\n.type {KN},@function\n{KN}:\n'
out+="\n".join(E.L)+"\n"
out+=f'''.section .rodata,"a"
.p2align 6
.amdhsa_kernel {KN}
  .amdhsa_next_free_vgpr 256
  .amdhsa_next_free_sgpr 102
  .amdhsa_accum_offset 256
  .amdhsa_group_segment_fixed_size 0
  .amdhsa_kernarg_size 104
  .amdhsa_user_sgpr_count 2
  .amdhsa_user_sgpr_kernarg_segment_ptr 1
  .amdhsa_system_sgpr_workgroup_id_x 1
.end_amdhsa_kernel
'''
open(sys.argv[1],"w").write(out)
print("instrs",len(E.L),"stamps",nts[0],"dumps",ndump[0])
```

```python
import re
TRANS = ("v_exp_f32","v_log_f32","v_rcp_f32","v_rsq_f32","v_sqrt_f32","v_sin_f32","v_cos_f32")
def vregs(op):
    op = op.strip()
    m = re.match(r"^-?(?:abs\()?v\[(\d+):(\d+)\]", op)
    if m: return list(range(int(m.group(1)), int(m.group(2))+1))
    m = re.match(r"^-?(?:abs\()?v(\d+)\b", op)
    if m: return [int(m.group(1))]
    return []
def sregs(op):
    op = op.strip()
    m = re.match(r"^s\[(\d+):(\d+)\]", op)
    if m: return list(range(int(m.group(1)), int(m.group(2))+1))
    m = re.match(r"^s(\d+)\b", op)
    if m: return [int(m.group(1))]
    if op.startswith("vcc"): return ["vcc"]
    return []
class Emit:
    def __init__(s):
        s.L=[]; s.t=0
        s.valu={}; s.trans={}; s.mfma={}; s.mfc={}; s.wst={}; s.dot={}; s.vs={}; s.m0=-99
        s.vm=[]
        s.cond=0
        s.nlab=0
        s.bg=[]; s.bgc=0; s.inbg=False; s.bgk=140
    def raw(s,x): s.L.append(x)
    def label(s,name):
        s.L.append(name+":")
    def newlab(s,p="L"):
        s.nlab+=1; return f"{p}_{s.nlab}"
    def nop(s,n):
        while n>0:
            k=min(n,16); s.L.append(f"    s_nop {k-1}"); s.t+=k; n-=k
    def I(s,txt,tag=None):
        mn,_,rest = txt.partition(" ")
        ops=[o.strip() for o in re.split(r",(?![^\[]*\])", rest)] if rest else []
        need=0
        def req(d,regs,ws):
            nonlocal need
            for r in regs:
                if r in d: need=max(need, ws-(s.t-d[r]-1))
        isv=mn.startswith("v_"); ismf=mn.startswith("v_mfma"); isds=mn.startswith("ds_")
        isbuf=mn.startswith("buffer_") or mn.startswith("global_")
        dst=[];src=[];sd=[];ss=[]
        if isv:
            if mn.startswith("v_cmp"):
                sd=sregs(ops[0]); src=sum((vregs(o) for o in ops[1:]),[]); ss=sum((sregs(o) for o in ops[1:]),[])
            elif mn in("v_readfirstlane_b32","v_readlane_b32"):
                sd=sregs(ops[0]); src=vregs(ops[1]); req(s.valu,src,1)
            else:
                dst=vregs(ops[0]); src=sum((vregs(o) for o in ops[1:]),[]); ss=sum((sregs(o) for o in ops[1:]),[])
                if mn.startswith("v_permlane"):
                    src=dst+src; dst=list(src); req(s.valu,src,2)
                if mn.startswith("v_dot2c") or mn.startswith("v_fmac"): src=src+dst
            req(s.vs,ss,2)
            if ismf:
                a=vregs(ops[1])+vregs(ops[2]); c=vregs(ops[3])
                req(s.valu,a+c,2); req(s.mfma,a,12); req(s.dot,a+c,3)
                if c!=dst: req(s.mfma,c,10);
                if c!=dst: req(s.mfma,dst,12)
            else:
                req(s.mfma,src+dst,12); req(s.mfc,dst,7); req(s.wst,dst,2)
                if mn not in TRANS: req(s.trans,src,1)
                else: req(s.trans,src,1)
                if mn.startswith("v_dot"):
                    req(s.dot,[r for r in src if r not in dst],3)
                else: req(s.dot,src+dst,3)
        elif isds:
            if mn.startswith("ds_read"):
                dst=vregs(ops[0]); src=vregs(ops[1])
            else:
                src=sum((vregs(o) for o in ops),[])
            req(s.mfma,src+dst,12); req(s.dot,src+dst,3); req(s.wst,dst,1)
        elif isbuf:
            lds=" lds" in txt
            if "load" in mn and not lds:
                dst=vregs(ops[0]); src=vregs(ops[1])
            else:
                src=sum((vregs(o) for o in ops[:2]),[])
            ss=sum((sregs(o.split()[0]) for o in ops if o),[])
            req(s.vs,ss,5); req(s.mfma,src+dst,12); req(s.dot,src+dst,3); req(s.wst,dst,1)
            if lds: need=max(need,1-(s.t-s.m0-1))
        else:
            ss=sum((sregs(o) for o in ops),[]); req(s.vs,ss,2)
            if mn.startswith("s_cbranch_vcc"): req(s.vs,["vcc"],2)
        if need>0: s.nop(need)
        s.L.append("    "+txt)
        t=s.t
        if isv:
            for r in sd: s.vs[r]=t
            if ismf:
                for r in dst: s.mfma[r]=t
                for r in vregs(ops[3]): s.mfc[r]=t
            else:
                for r in dst:
                    s.valu[r]=t
                    if mn in TRANS: s.trans[r]=t
                    if mn.startswith("v_dot"): s.dot[r]=t
        if isbuf:
            if "store" in mn and ("x4" in mn or "x3" in mn):
                for r in vregs(ops[0]): s.wst[r]=t
            s.vm.append((tag, s.cond))
        if mn.startswith("s_") and ops and ops[0]=="m0": s.m0=t
        if mn=="s_nop": s.t+=int(ops[0])+1
        else: s.t+=1
        if not s.inbg:
            s.bgc+= 64 if ismf else 16 if mn in TRANS else 8 if (isv or isds) else 4
            if s.bg and s.bgc>=s.bgk and not s.cond and (isv or isds) and not mn.startswith("v_cmp") and not mn.startswith("v_read"):
                s.inbg=True; s.bg.pop(0)(); s.inbg=False; s.bgc=0
    def flush(s,n=None):
        s.inbg=True
        k=len(s.bg) if n is None else min(n,len(s.bg))
        for _ in range(k): s.bg.pop(0)()
        s.inbg=False
    def wait_vm(s,tag):
        idx=[i for i,(g,c) in enumerate(s.vm) if g==tag]
        if not idx: return
        n=sum(1 for g,c in s.vm[idx[-1]+1:] if not c)
        s.I(f"s_waitcnt vmcnt({min(n,63)})")
        if not s.cond: s.vm=s.vm[idx[-1]+1:]
    def wait_vm0(s):
        s.I("s_waitcnt vmcnt(0)")
        if not s.cond: s.vm=[]
    def settle(s):
        s.nop(12)
    def mark(s): return s.t
    def join(s,name,tb):
        sk=s.t-tb
        for d in (s.valu,s.trans,s.mfma,s.mfc,s.wst,s.dot,s.vs):
            for k in d:
                if d[k]<tb: d[k]+=sk
        if s.m0<tb: s.m0+=sk
        s.label(name)
```

```python
import sys
from emit import Emit
DBG = int(sys.argv[2]) if len(sys.argv)>2 else 0
E=Emit(); I=E.I
KN="standalone__conformer_family_zipformer__speech_kernel"
SA=0; SB=65536; ACT=131072; AUX=147456; STATS=AUX; QF=AUX+4096; MST=AUX+8192; HIM=AUX+4096; RFL=AUX+12288+2048
E1=0; KV=0x400000; E3=0x600000; E4=0x700000; E5=0x800000; WTA=0x900000; WTB=0x980000; WTP=0xA00000; WTO=0xA40000; DWP=0xA80000; FL=0xB00000; DUMP=0x1000000; TS=0x3000000
pX,pW1a,pW1b,pQKV,pWO,pPW1,pDW,pPW2,pW2a,pW2b,pOUT,pDBG,pWS=[8+2*i for i in range(13)]
sX,sO,sWS,sW,sD=36,40,44,48,52
sS,sTile,sB,sR,sWv=56,57,58,59,60
sT0,sT1,sT2,sT3,sCnt=61,62,63,3,4
sC=6
sWG=5
sXCC=64; sFAST=65; sE1=66; sX4=67; sKV=68; sKVo=69; sFB=70; sQ=71; sW13=72; sW10=73; sBG0=74; sBG1=75; sWQ=76; sEP=52; sTS=80
def srd(n): return f"s[{n}:{n+3}]"
vTID,vLANE,vL16,vTRA,vTRB,vDMA,vC16,vACTW,vACTR,vSTW,vSTR,vXOFF,vT0,vT1,vT2,vT3=range(16)
X=16; ACC=32; T=48; G=64; RA=64; RB=128; RC=192; WE=224
def v(n,k=1): return f"v{n}" if k==1 else f"v[{n}:{n+k-1}]"
nts=[0]
def stamp():
    if DBG&1 and nts[0]<20:
        I("s_memtime s[100:101]" if DBG&4 else "s_memrealtime s[100:101]"); I("s_waitcnt lgkmcnt(0)"); I(f"s_mov_b32 s{sTS+nts[0]}, s100"); nts[0]+=1
ndump=[0]
def dump(reg,n=16):
    if DBG&2:
        i=ndump[0]; ndump[0]+=1
        I(f"s_lshl_b32 s{sT0}, s{sWG}, 15"); I(f"s_lshl_b32 s{sT1}, s{sWv}, 12"); I(f"s_add_u32 s{sT0}, s{sT0}, s{sT1}")
        I(f"s_add_u32 s{sT0}, s{sT0}, {DUMP+i*(1<<23)}")
        for q in range(n//4):
            I(f"buffer_store_dwordx4 {v(reg+4*q,4)}, v{vL16}, {srd(sWS)}, s{sT0} offen offset:{q*1024}")
        E.wait_vm0()
def setW(p,nbytes):
    I(f"s_mov_b32 s{sW}, s{p}"); I(f"s_mov_b32 s{sW+1}, s{p+1}"); I(f"s_mov_b32 s{sW+2}, {nbytes}")
def bar(lgkm=True):
    if lgkm: I("s_waitcnt lgkmcnt(0)")
    I("s_barrier")

def pack16(src,dst):
    for i in range(8): I(f"v_cvt_pk_bf16_f32 v{dst+i}, v{src+2*i}, v{src+2*i+1}")

def ln_stats(after_bar=None):
    I(f"v_pk_mul_f32 {v(T,2)}, {v(X,2)}, {v(X,2)}")
    I(f"v_pk_add_f32 {v(T+2,2)}, {v(X,2)}, {v(X+2,2)}")
    for i in range(1,8): I(f"v_pk_fma_f32 {v(T,2)}, {v(X+2*i,2)}, {v(X+2*i,2)}, {v(T,2)}")
    for i in range(2,8): I(f"v_pk_add_f32 {v(T+2,2)}, {v(T+2,2)}, {v(X+2*i,2)}")
    I(f"v_add_f32 v{vT1}, v{T}, v{T+1}")
    I(f"v_add_f32 v{vT0}, v{T+2}, v{T+3}")
    I(f"v_permlane32_swap_b32 v{vT0}, v{vT1}")
    I(f"v_add_f32 v{vT0}, v{vT0}, v{vT1}")
    I(f"ds_write_b32 v{vSTW}, v{vT0}")
    bar()
    for i in range(4): I(f"ds_read2st64_b32 {v(T+2*i,2)}, v{vSTR} offset0:{2*i} offset1:{2*i+1}")
    if after_bar: after_bar()
    I("s_waitcnt lgkmcnt(0)")
    I(f"v_pk_add_f32 {v(T,2)}, {v(T,2)}, {v(T+2,2)}")
    I(f"v_pk_add_f32 {v(T+4,2)}, {v(T+4,2)}, {v(T+6,2)}")
    I(f"v_pk_add_f32 {v(T,2)}, {v(T,2)}, {v(T+4,2)}")
    I(f"v_add_f32 v{vT0}, v{T}, v{T+1}")
    I(f"v_mul_f32 v{vT0}, 0x3b800000, v{vT0}")
    I(f"v_mov_b32 v{vT1}, v{vT0}")
    I(f"v_permlane32_swap_b32 v{vT0}, v{vT1}")
    I(f"v_fma_f32 v{vT1}, -v{vT0}, v{vT0}, v{vT1}")
    I(f"v_max_f32 v{vT1}, 0, v{vT1}")
    I(f"v_add_f32 v{vT1}, 0x3727c5ac, v{vT1}")
    I(f"v_rsq_f32 v{vT2}, v{vT1}")
    I(f"v_mul_f32 v{vT3}, -v{vT0}, v{vT2}" if False else f"v_mul_f32_e64 v{vT3}, -v{vT0}, v{vT2}")
def ln_apply(dst):
    for i in range(8):
        I(f"v_pk_fma_f32 {v(dst+2*i,2)}, {v(X+2*i,2)}, {v(vT2,2)}, {v(vT2,2)} op_sel:[0,0,1] op_sel_hi:[1,0,1]")
def ln_to_act(after_bar=None):
    ln_stats(after_bar); ln_apply(T); pack16(T,T)
    I(f"ds_write_b128 v{vACTW}, {v(T,4)}"); I(f"ds_write_b128 v{vACTW}, {v(T+4,4)} offset:1024")

def silu(src,n,tmp):
    for i in range(0,n,2): I(f"v_pk_mul_f32 {v(tmp+i,2)}, {v(src+i,2)}, s[{sC}:{sC+1}]")
    for i in range(n): I(f"v_exp_f32 v{tmp+i}, v{tmp+i}")
    for i in range(0,n,2): I(f"v_pk_add_f32 {v(tmp+i,2)}, {v(tmp+i,2)}, 1.0 op_sel_hi:[1,0]")
    for i in range(n): I(f"v_rcp_f32 v{tmp+i}, v{tmp+i}")
    for i in range(0,n,2): I(f"v_pk_mul_f32 {v(src+i,2)}, {v(src+i,2)}, {v(tmp+i,2)}")
def setC(val):
    I(f"s_mov_b32 s{sC}, {val}"); I(f"s_mov_b32 s{sC+1}, {val}")
NLOG2E="0xbfb8aa3b"

def poll(loads,regs,valid_flags=False):
    top=E.newlab("P"); done=E.newlab("D"); sv=E.inbg; E.inbg=True
    I(f"s_movk_i32 s{sCnt}, 0x4000")
    E.nop(2); E.label(top)
    loads()
    E.wait_vm0()
    if valid_flags:
        valid_flags()
    else:
        r=list(regs); acc=None
        if len(r)==1: acc=r[0]
        else:
            acc=vT0
            if len(r)%2==1: I(f"v_max3_u32 v{acc}, v{r[0]}, v{r[1]}, v{r[2]}"); r=r[3:]
            else: I(f"v_max_u32 v{acc}, v{r[0]}, v{r[1]}"); r=r[2:]
            for i in range(0,len(r),2): I(f"v_max3_u32 v{acc}, v{acc}, v{r[i]}, v{r[i+1]}")
        I(f"v_cmp_eq_u32 vcc, -1, v{acc}")
    I(f"s_cbranch_vccz {done}")
    I("s_sleep 1")
    I(f"s_sub_u32 s{sCnt}, s{sCnt}, 1")
    I(f"s_cbranch_scc0 {top}")
    E.label(done); E.nop(2); E.inbg=sv

TLB=0; PTE=int(sys.argv[5]) if len(sys.argv)>5 else 0; WOJ=int(sys.argv[4]) if len(sys.argv)>4 else 2
ROT=int(sys.argv[3]) if len(sys.argv)>3 else 0
def dma_tr(slot,sr,stride,sbase,add,tag,q=False):
    I(f"v_lshrrev_b32 v{vDMA}, 3, v{vLANE}"); I(f"v_mul_u32_u24 v{vDMA}, {stride}, v{vDMA}"); I(f"v_add_u32 v{vDMA}, v{vDMA}, v{vC16}")
    if q:
        pass
    def mk(i):
        def f():
            I(f"s_add_u32 m0, s{sW13}, {slot+1024*i}"); I(f"s_add_u32 s{sBG1}, s{sbase}, {add+8*stride*i}")
            I(f"buffer_load_dwordx4 v{vDMA}, {srd(sr)}, s{sBG1} offen lds",tag)
        return f
    return [mk(i) for i in range(8)]
def dma_lin(ldsbase,sgbase,add,tag,n=8):
    def mk(i):
        def f():
            if i%4==0:
                I(f"s_add_u32 m0, s{sW13}, {ldsbase+1024*i}"); I(f"s_add_u32 s{sBG1}, s{sgbase}, {add+1024*i}")
            I(f"buffer_load_dwordx4 v{vL16}, {srd(sWS)}, s{sBG1} offen offset:{1024*(i%4)} sc1 lds",tag)
        return f
    return [mk(i) for i in range(n)]
def ld_frags(dst,sgbase,add,tag,n=16,st=sBG0):
    def mk(i):
        def f():
            if i%4==0: I(f"s_add_u32 s{st}, s{sgbase}, {add+1024*i}")
            I(f"buffer_load_dwordx4 {v(dst+4*i,4)}, v{vL16}, {srd(sWS)}, s{st} offen offset:{1024*(i%4)} sc1",tag)
        return f
    return [mk(i) for i in range(n)]
def run(l):
    for f in l: f()

def gemm(ks0,nks,mode,a,boff,first,swap=False,ring=RA,depth=5,side=(),atag=None):
    per={"tr":3,"lds":2,"reg":1}[mode]; rs=4 if mode=="reg" else 8
    side=list(side)
    def rd(i):
        r=ring+rs*(i%(depth+1)); ks=ks0+i
        I(f"ds_read_b128 {v(r,4)}, v{vACTR} offset:{boff+ks*1024}")
        if mode=="tr":
            I(f"ds_read_b64_tr_b16 {v(r+4,2)}, v{a} offset:{i*2048}"); I(f"ds_read_b64_tr_b16 {v(r+6,2)}, v{a} offset:{i*2048+1024}")
        elif mode=="lds": I(f"ds_read_b128 {v(r+4,4)}, v{a} offset:{i*1024}")
    for i in range(min(depth,nks)): rd(i)
    if atag: E.wait_vm(atag)
    for i in range(nks):
        out=min(nks,i+depth)-(i+1)
        I(f"s_waitcnt lgkmcnt({per*out})")
        r=ring+rs*(i%(depth+1))
        A_=v(a+4*(ks0+i),4) if mode=="reg" else v(r+4,4); B_=v(r,4)
        if swap: A_,B_=B_,A_
        I(f"v_mfma_f32_32x32x16_bf16 {v(ACC,16)}, {A_}, {B_}, {'0' if (first and i==0) else v(ACC,16)}")
        if i+depth<nks: rd(i+depth)
        k=-(-len(side)//(nks-i))
        for _ in range(k): side.pop(0)()

def pub(insts):
    l1=E.newlab(); l2=E.newlab()
    I(f"s_cmp_eq_u32 s{sFAST}, 0"); I(f"s_cbranch_scc1 {l1}"); tb=E.mark(); E.cond+=1
    for x in insts: I(x)
    I(f"s_branch {l2}"); tb2=E.mark(); E.join(l1,tb)
    for x in insts: I(x+" sc1")
    E.cond-=1; E.join(l2,tb2)
def touch(p,nbytes,dst,sr):
    share=nbytes//32
    I(f"s_and_b32 s{sT0}, s{sWG}, 31"); I(f"s_mul_i32 s{sT0}, s{sT0}, {share}")
    I(f"v_lshlrev_b32 v{vT0}, 7, v0"); I(f"v_cmp_gt_u32 vcc, {share}, v{vT0}"); I(f"v_mov_b32 v{vT1}, 0x7ffffff0"); I(f"v_cndmask_b32 v{vT0}, v{vT1}, v{vT0}, vcc")
    I(f"buffer_load_dword v{dst}, v{vT0}, {srd(sr)}, s{sT0} offen","pf")
def reset_local(sc,e35=True,R=T+8,e1=True):
    for i in range(4): I(f"v_mov_b32 v{R+i}, -1")
    if e1:
        for j in range(2): I(f"buffer_store_dwordx4 {v(R,4)}, v{vL16}, {srd(sWS)}, s{sE1} offen offset:{1024*j}{sc}","rst")
    if e35:
        I(f"s_lshr_b32 s{sT0}, s{sWv}, 2"); I(f"s_mul_i32 s{sT0}, s{sT0}, {E5-E3-4096}"); I(f"s_add_u32 s{sT0}, s{sT0}, s{sX4}"); I(f"s_add_u32 s{sT0}, s{sT0}, {E3}")
        I(f"buffer_store_dwordx4 {v(R,4)}, v{vL16}, {srd(sWS)}, s{sT0} offen{sc}","rst")
def w7(fn):
    lab=E.newlab(); I(f"s_cmp_lg_u32 s{sWv}, 7"); I(f"s_cbranch_scc1 {lab}"); tb=E.mark(); E.cond+=1
    fn()
    E.cond-=1; E.join(lab,tb)
def flag_put(bits):
    I(f"s_or_b32 s{sT0}, s{sXCC}, {bits}"); I(f"v_mov_b32 v{vT0}, s{sEP}"); I(f"v_mov_b32 v{vT1}, s{sT0}"); I(f"v_mov_b32 v{vT2}, 0")
    I(f"s_lshl_b32 s{sT0}, s{sWG}, 7"); I(f"s_add_u32 s{sT0}, s{sT0}, {FL}"); I("s_mov_b64 exec, 1")
    I(f"buffer_store_dwordx2 {v(vT0,2)}, v{vT2}, {srd(sWS)}, s{sT0} offen sc1"); I("s_mov_b64 exec, -1")
def flag_wait(bits,allwg,R=RB):
    n=4 if allwg else 1
    if allwg: I(f"v_lshlrev_b32 v{vT1}, 7, v{vLANE}"); I(f"s_mov_b32 s{sT0}, {FL}")
    else: I(f"v_and_b32 v{vT1}, 3, v{vLANE}"); I(f"v_lshlrev_b32 v{vT1}, 7, v{vT1}"); I(f"s_lshl_b32 s{sT0}, s{sTile}, 9"); I(f"s_add_u32 s{sT0}, s{sT0}, {FL}")
    def loads():
        for k in range(n):
            I(f"s_add_u32 s{sT1}, s{sT0}, {k*8192}"); I(f"buffer_load_dwordx2 {v(R+2*k,2)}, v{vT1}, {srd(sWS)}, s{sT1} offen sc1")
    def chk():
        I(f"v_mov_b32 v{vT0}, 0")
        for k in range(n):
            I(f"v_xor_b32 v{vT2}, s{sEP}, v{R+2*k}"); I(f"v_or_b32 v{vT0}, v{vT0}, v{vT2}")
            I(f"v_not_b32 v{vT2}, v{R+2*k+1}"); I(f"v_and_b32 v{vT2}, {bits}, v{vT2}"); I(f"v_or_b32 v{vT0}, v{vT0}, v{vT2}")
        I(f"v_cmp_ne_u32 vcc, 0, v{vT0}")
    poll(loads,[],chk)
def exch_pub():
    pack16(ACC,T)
    pub([f"buffer_store_dwordx4 {v(T,4)}, v{vL16}, {srd(sWS)}, s{sE1} offen", f"buffer_store_dwordx4 {v(T+4,4)}, v{vL16}, {srd(sWS)}, s{sE1} offen offset:1024"])
def exch_get(final,R,bg=()):
    I(f"s_xor_b32 s{sT1}, s{sE1}, 0x4000"); I(f"s_xor_b32 s{sT2}, s{sE1}, 0x8000"); I(f"s_xor_b32 s{sT3}, s{sE1}, 0xc000")
    off=vL16
    if final:
        I(f"v_bfe_u32 v{vT1}, v{vLANE}, 3, 2"); I(f"v_cmp_eq_u32 vcc, s{sS}, v{vT1}"); I(f"v_mov_b32 v{vT1}, 0x7ffffff0")
        I(f"v_cndmask_b32 v{vT1}, v{vT1}, v{vL16}, vcc"); off=vT1
    for i in range(8): I(f"v_pk_fma_f32 {v(X+2*i,2)}, {v(ACC+2*i,2)}, 0.5, {v(X+2*i,2)} op_sel_hi:[1,0,1]")
    I(f"v_mov_b32 v{vT2}, 0x3f00"); I(f"v_mov_b32 v{vT3}, 0.5")
    def loads():
        for k,sr in enumerate((sT1,sT2,sT3)):
            for j in range(2): I(f"buffer_load_dwordx4 {v(R+8*k+4*j,4)}, v{off}, {srd(sWS)}, s{sr} offen offset:{1024*j} sc1")
    poll(loads,list(range(R,R+24)))
    if bg: w7(lambda: (flag_put(64), I(f"v_mov_b32 v{vT2}, 0x3f00")))
    E.bg+=bg; E.bgk=60; E.bgc=60
    for k in range(3):
        for i in range(8):
            I(f"v_dot2c_f32_bf16 v{X+2*i}, v{R+8*k+i}, v{vT2}"); I(f"v_dot2c_f32_bf16 v{X+2*i+1}, v{R+8*k+i}, v{vT3}")
def hid_out():
    setC(NLOG2E); silu(ACC,16,T); pack16(ACC,T)
    I(f"ds_write_b128 v{vACTW}, {v(T,4)} offset:16384"); I(f"ds_write_b128 v{vACTW}, {v(T+4,4)} offset:17408")
def addX():
    for i in range(8): I(f"v_pk_add_f32 {v(X+2*i,2)}, {v(X+2*i,2)}, {v(ACC+2*i,2)}")
def mksrd(sr,p,n):
    I(f"s_mov_b32 s{sr}, s{p}"); I(f"s_mov_b32 s{sr+1}, s{p+1}"); I(f"s_mov_b32 s{sr+2}, {n}"); I(f"s_mov_b32 s{sr+3}, 0x20000")

I(f"s_load_dwordx16 s[8:23], s[0:1], 0"); I("s_load_dwordx8 s[24:31], s[0:1], 64"); I("s_load_dwordx2 s[32:33], s[0:1], 96")
I("s_cmp_ge_u32 s2, 256"); I("s_cbranch_scc1 L_end")
stamp()
I(f"s_and_b32 s{sWG}, s2, 7"); I(f"s_lshl_b32 s{sWG}, s{sWG}, 5"); I(f"s_lshr_b32 s{sT0}, s2, 3"); I(f"s_or_b32 s{sWG}, s{sWG}, s{sT0}")
I(f"s_and_b32 s{sS}, s{sWG}, 3"); I(f"s_lshr_b32 s{sTile}, s{sWG}, 2"); I(f"s_lshr_b32 s{sB}, s{sWG}, 7"); I(f"s_and_b32 s{sR}, s{sTile}, 31")
I(f"v_lshrrev_b32 v{vT2}, 6, v0"); I(f"v_and_b32 v{vLANE}, 63, v0")
I(f"v_readfirstlane_b32 s{sWv}, v{vT2}")
I(f"v_lshlrev_b32 v{vL16}, 4, v{vLANE}")
I(f"v_and_b32 v{vT1}, 31, v{vLANE}"); I(f"v_lshlrev_b32 v{vT1}, 9, v{vT1}"); I(f"v_lshl_or_b32 v{vT1}, v{vT2}, 6, v{vT1}")
I(f"v_lshrrev_b32 v{vT3}, 5, v{vLANE}"); I(f"v_lshl_or_b32 v{vXOFF}, v{vT3}, 4, v{vT1}")
I(f"v_and_b32 v{vT1}, 7, v{vLANE}"); I(f"v_bfe_u32 v{vT2}, v{vLANE}, 4, 1"); I(f"v_lshlrev_b32 v{vT3}, 2, v{vT2}")
I(f"v_xor_b32 v{vT1}, v{vT1}, v{vT3}"); I(f"v_lshlrev_b32 v{vC16}, 4, v{vT1}")
I(f"s_lshl_b32 s{sW13}, s{sWv}, 13"); I(f"s_lshl_b32 s{sW10}, s{sWv}, 10")
I(f"s_lshr_b32 s{sT2}, s{sWv}, 1"); I(f"s_and_b32 s{sT3}, s{sWv}, 1")
I(f"s_lshl_b32 s{sKV}, s{sT2}, 7"); I(f"s_lshl_b32 s{sT0}, s{sT3}, 17"); I(f"s_add_u32 s{sBG0}, s{sKV}, s{sT0}"); I(f"s_lshl_b32 s{sT0}, s{sS}, 9"); I(f"s_add_u32 s{sBG0}, s{sBG0}, s{sT0}")
I(f"s_lshl_b32 s{sT0}, s{sT3}, 15"); I(f"s_add_u32 s{sFB}, s{sKV}, s{sT0}"); I(f"s_lshl_b32 s{sT0}, s{sS}, 17"); I(f"s_add_u32 s{sFB}, s{sFB}, s{sT0}")
I(f"s_lshl_b32 s{sQ}, s{sT2}, 9"); I(f"s_mul_i32 s{sT0}, s{sT3}, {64*1536}"); I(f"s_add_u32 s{sQ}, s{sQ}, s{sT0}"); I(f"s_lshl_b32 s{sT0}, s{sS}, 7"); I(f"s_add_u32 s{sQ}, s{sQ}, s{sT0}")
I(f"s_cmp_ge_u32 s{sWv}, 6"); I(f"s_cselect_b32 s{sQ}, 0x70000000, s{sQ}")
I(f"s_mul_i32 s{sT2}, s{sB}, 512000")
I("s_waitcnt lgkmcnt(0)")
def tlb():
    for k,p in enumerate((pW1a,pW1b,pQKV,pWO,pPW1,pPW2,pW2a,pW2b,pOUT,pDBG)):
        I(f"global_load_dword v{200+k}, v{vL16}, s[{p}:{p+1}]")
    I("s_mov_b64 exec, 63"); I(f"v_lshlrev_b32 v{vT0}, 21, v{vLANE}"); I(f"global_load_dword v{212}, v{vT0}, s[{pWS}:{pWS+1}]"); I("s_mov_b64 exec, -1")
if TLB:
    I("s_mov_b64 exec, 1"); w7(tlb); I("s_mov_b64 exec, -1")
I(f"s_add_u32 s{sX}, s{pX}, s{sT2}"); I(f"s_addc_u32 s{sX+1}, s{pX+1}, 0"); I(f"s_mov_b32 s{sX+2}, 512000"); I(f"s_mov_b32 s{sX+3}, 0x20000")
I(f"s_lshl_b32 s{sT3}, s{sR}, 14")
for g in range(2): I(f"buffer_load_dwordx4 {v(ACC+4*g,4)}, v{vXOFF}, {srd(sX)}, s{sT3} offen offset:{32*g}","x")
mksrd(sW,pW1a,524288)
touch(pW1a,524288,250,sW)
mksrd(sWS,pDBG,256)
lab=E.newlab(); I(f"s_or_b32 s{sT3}, s{sWG}, s{sWv}"); I(f"s_cmp_lg_u32 s{sT3}, 0"); I(f"s_cbranch_scc1 {lab}"); tb=E.mark(); E.cond+=1
I("s_memrealtime s[34:35]"); I("s_waitcnt lgkmcnt(0)"); I("s_or_b32 s34, s34, 1"); I(f"v_mov_b32 v{vT2}, s34"); I(f"v_mov_b32 v{vT3}, 0"); I("s_mov_b64 exec, 1")
I(f"buffer_store_dword v{vT2}, v{vT3}, {srd(sWS)}, 0 offen sc1"); I("s_mov_b64 exec, -1")
E.cond-=1; E.join(lab,tb)
I(f"s_mov_b32 s{sO+3}, 0x20000")
mksrd(sX,pW1b,524288) if False else None
sWB=sD+0
mksrd(sWQ,pW1b,524288)
I(f"buffer_load_dword v251, v{vT0}, {srd(sWQ)}, s{sT0} offen","pf")
run(dma_tr(SA,sW,2048,sBG0,0,"fa1"))
mksrd(sWS,pWS,0x10000000)
I(f"s_getreg_b32 s{sXCC}, hwreg(HW_REG_XCC_ID)"); I(f"s_and_b32 s{sXCC}, s{sXCC}, 15"); I(f"s_or_b32 s{sXCC}, s{sXCC}, 16")
I(f"v_lshrrev_b32 v{vT3}, 5, v{vLANE}"); I(f"v_bfe_u32 v{vT1}, v{vLANE}, 2, 2"); I(f"v_lshl_or_b32 v{vT3}, v{vT3}, 2, v{vT1}")
I(f"v_lshlrev_b32 v{vTRA}, 7, v{vT3}")
I(f"v_and_b32 v{vT2}, 3, v{vLANE}"); I(f"v_lshl_or_b32 v{vTRA}, v{vT2}, 3, v{vTRA}")
I(f"v_bfe_u32 v{vT2}, v{vLANE}, 3, 1"); I(f"v_lshl_or_b32 v{vTRA}, v{vT2}, 6, v{vTRA}")
I(f"v_bfe_u32 v{vT2}, v{vLANE}, 4, 1"); I(f"v_lshl_or_b32 v{vTRA}, v{vT2}, 5, v{vTRA}")
I(f"s_and_b32 s{sT0}, s{sWv}, 1"); I(f"s_lshl_b32 s{sT0}, s{sT0}, 6"); I(f"s_lshr_b32 s{sT1}, s{sWv}, 1"); I(f"s_lshl_b32 s{sT1}, s{sT1}, 14")
I(f"v_xor_b32 v{vTRA}, s{sT0}, v{vTRA}"); I(f"v_add_u32 v{vTRA}, s{sT1}, v{vTRA}"); I(f"v_add_u32 v{vTRB}, 0x10000, v{vTRA}")
I(f"v_add_u32 v{vACTR}, {ACT}, v{vL16}"); I(f"s_lshl_b32 s{sT0}, s{sWv}, 11"); I(f"v_add_u32 v{vACTW}, s{sT0}, v{vACTR}")
I(f"s_lshl_b32 s{sE1}, s{sWG}, 14"); I(f"s_add_u32 s{sE1}, s{sE1}, s{sT0}")
I(f"s_lshl_b32 s{sX4}, s{sWG}, 12"); I(f"s_add_u32 s{sX4}, s{sX4}, s{sW10}")
I(f"v_lshlrev_b32 v{vSTR}, 2, v{vLANE}"); I(f"v_add_u32 v{vSTR}, {STATS}, v{vSTR}"); I(f"s_lshl_b32 s{sT0}, s{sWv}, 8"); I(f"v_add_u32 v{vSTW}, s{sT0}, v{vSTR}")
reset_local("",False)
fa2=dma_tr(SB,sW,2048,sBG0,128*2048,"fa2")
I(f"s_lshl_b32 s{sT0}, s{sB}, 2"); I(f"s_add_u32 s{sT0}, s{sT0}, s{sS}"); I(f"s_lshl_b32 s{sT0}, s{sT0}, 18"); I(f"s_add_u32 s{sT0}, s{sT0}, {KV}")
I(f"s_lshl_b32 s{sT1}, s{sWv}, 15"); I(f"s_add_u32 s{sKV}, s{sT0}, s{sT1}")
I(f"s_lshl_b32 s{sT1}, s{sR}, 13"); I(f"s_add_u32 s{sKVo}, s{sT0}, s{sT1}")
def setP(p,n):
    I(f"s_mov_b32 s{sO}, s{p}"); I(f"s_mov_b32 s{sO+1}, s{p+1}"); I(f"s_mov_b32 s{sO+2}, {n}")
PT=RB; vPT=RB+60
lpt=E.newlab(); lb=E.newlab(); lp=E.newlab(); lo=E.newlab()
I(f"v_and_b32 v{vPT}, 31, v{vLANE}"); I(f"v_lshlrev_b32 v{vPT}, 1, v{vPT}")
I(f"s_lshl_b32 s{sT1}, s{sWG}, 1"); I(f"s_and_b32 s{sT3}, s{sWv}, 1"); I(f"s_add_u32 s{sT1}, s{sT1}, s{sT3}")
I(f"s_cmp_ge_u32 s{sWv}, 4"); I(f"s_cselect_b32 s{sT1}, s{sWG}, s{sT1}")
I(f"s_lshl_b32 s34, s{sT1}, 10"); I(f"s_and_b32 s{sT3}, s{sT1}, 15"); I(f"s_lshr_b32 s35, s{sT1}, 4")
E.cond+=1; tb=E.mark()
I(f"s_cmp_ge_u32 s{sWv}, 2"); I(f"s_cbranch_scc1 {lb}")
setP(pW2a,524288); I(f"s_movk_i32 s54, 2048"); I(f"s_lshl_b32 s53, s35, 6"); I(f"s_add_u32 s34, s34, {WTA}"); I(f"s_branch {lpt}")
E.label(lb); I(f"s_cmp_ge_u32 s{sWv}, 4"); I(f"s_cbranch_scc1 {lp}")
setP(pW2b,524288); I(f"s_movk_i32 s54, 512"); I(f"s_and_b32 s53, s35, 7"); I(f"s_lshl_b32 s53, s53, 6"); I(f"s_lshr_b32 s35, s35, 3"); I(f"s_lshl_b32 s35, s35, 17")
I(f"s_add_u32 s53, s53, s35"); I(f"s_add_u32 s34, s34, {WTB}"); I(f"s_branch {lpt}")
E.label(lp); I(f"s_cmp_ge_u32 s{sWv}, 5"); I(f"s_cbranch_scc1 {lo}")
setP(pPW1,262144); I(f"s_movk_i32 s54, 1024"); I(f"s_lshl_b32 s53, s35, 5"); I(f"s_add_u32 s34, s34, {WTP}")
I(f"v_bfe_u32 v{vT1}, v{vLANE}, 4, 1"); I(f"v_mul_u32_u24 v{vT1}, 480, v{vT1}"); I(f"v_add_u32 v{vPT}, v{vPT}, v{vT1}"); I(f"s_branch {lpt}")
E.label(lo)
I(f"s_cmp_ge_u32 s{sWG}, 128"); I(f"s_cselect_b32 s{sO}, s{pPW2}, s{pWO}"); I(f"s_cselect_b32 s{sO+1}, s{pPW2+1}, s{pWO+1}")
I(f"s_movk_i32 s54, 512"); I(f"s_and_b32 s53, s35, 7"); I(f"s_lshl_b32 s53, s53, 6"); I(f"s_add_u32 s34, s34, {WTO}")
I(f"s_cmp_ge_u32 s{sWv}, 6"); I(f"s_cselect_b32 s{sO+2}, 0, 131072"); I(f"s_cselect_b32 s34, 0x70000000, s34")
E.cond-=1; E.join(lpt,tb); E.nop(2)
I(f"s_mul_i32 s{sT3}, s{sT3}, s54"); I(f"s_lshl_b32 s{sT3}, s{sT3}, 4"); I(f"s_add_u32 s53, s53, s{sT3}")
I(f"v_lshrrev_b32 v{vT1}, 5, v{vLANE}"); I(f"s_lshl_b32 s55, s54, 2"); I(f"v_mad_u32_u24 v{vPT}, v{vT1}, s55, v{vPT}")
def ptl(e):
    def f():
        I(f"buffer_load_ushort v{PT+16+e}, v{vPT}, {srd(sO)}, s53 offen","pt")
        if e<7: I(f"s_add_u32 s53, s53, s54")
        if e==3: I(f"s_add_u32 s53, s53, s55")
    return f
RR=RB+56
def rs1(): reset_local("",e1=False,R=RR)
def rs2():
    I(f"s_lshl_b32 s{sT0}, s{sWG}, 12"); I(f"s_add_u32 s{sT0}, s{sT0}, {E4-8192}"); I(f"s_cmp_lt_u32 s{sWv}, 4"); I(f"s_cselect_b32 s{sT0}, s{sKVo}, s{sT0}")
    I(f"s_lshl_b32 s{sT1}, s{sWv}, 11"); I(f"s_add_u32 s{sT0}, s{sT0}, s{sT1}"); I(f"s_cmp_ge_u32 s{sWv}, 6"); I(f"s_cselect_b32 s{sT0}, 0x70000000, s{sT0}")
    for j in range(2): I(f"buffer_store_dwordx4 {v(RR,4)}, v{vL16}, {srd(sWS)}, s{sT0} offen offset:{1024*j} sc1","rst")
ptls=[ptl(e) for e in range(8)]
side1=[rs1,lambda: touch(pQKV,393216,252,sW)]
if PTE: run(ptls)
else: side1=ptls+side1
def dwjob():
    lend=E.newlab()
    I(f"s_cmp_ge_u32 s{sWG}, 4"); I(f"s_cbranch_scc1 {lend}"); tb=E.mark(); E.cond+=1; I(f"s_cmp_lg_u32 s{sWv}, 6"); I(f"s_cbranch_scc1 {lend}")
    setP(pDW,31*512); I(f"v_lshlrev_b32 v{vT0}, 1, v{vLANE}"); I(f"s_lshl_b32 s{sT0}, s{sWG}, 7"); E.wait_vm0(); I(f"v_mov_b32 v{PT+16+31}, 0")
    for i in range(31):
        I(f"buffer_load_ushort v{PT+16+i}, v{vT0}, {srd(sO)}, s{sT0} offen offset:{(i%8)*512}")
        if i%8==7: I(f"s_add_u32 s{sT0}, s{sT0}, 4096")
    I(f"s_lshl_b32 s{sT0}, s{sWG}, 12"); I(f"s_add_u32 s{sT0}, s{sT0}, {DWP}")
    I(f"v_bfe_u32 v{vT0}, v{vLANE}, 4, 2"); I(f"v_lshlrev_b32 v{vT0}, 7, v{vT0}"); I(f"v_bfe_u32 v{vT1}, v{vLANE}, 2, 1"); I(f"v_lshl_or_b32 v{vT0}, v{vT1}, 6, v{vT0}")
    I(f"v_bfe_u32 v{vT1}, v{vLANE}, 3, 1"); I(f"v_lshl_or_b32 v{vT0}, v{vT1}, 5, v{vT0}"); I(f"v_bfe_u32 v{vT1}, v{vLANE}, 1, 1"); I(f"v_lshl_or_b32 v{vT0}, v{vT1}, 4, v{vT0}")
    I(f"v_and_b32 v{vT1}, 1, v{vLANE}"); I(f"v_lshl_or_b32 v{vT0}, v{vT1}, 11, v{vT0}")
    E.wait_vm0()
    for q in range(16): I(f"v_lshl_or_b32 v{PT+q}, v{PT+17+2*q}, 16, v{PT+16+2*q}")
    for q in range(4): I(f"buffer_store_dwordx4 {v(PT+4*q,4)}, v{vT0}, {srd(sWS)}, s{sT0} offen offset:{512*q} sc1")
    E.cond-=1; E.join(lend,tb); E.nop(2)
E.wait_vm("x")
E.bg+=fa2; E.bgk=70; E.bgc=70
for g in range(2):
    I(f"v_permlane32_swap_b32 v{ACC+4*g}, v{ACC+4*g+2}"); I(f"v_permlane32_swap_b32 v{ACC+4*g+1}, v{ACC+4*g+3}")
for i in range(8):
    I(f"v_lshlrev_b32 v{X+2*i}, 16, v{ACC+i}"); I(f"v_and_b32 v{X+2*i+1}, 0xffff0000, v{ACC+i}")
stamp()
ln_to_act()
E.flush(); E.bgk=140
mksrd(sW,pQKV,393216)
E.wait_vm("fa1"); bar()
stamp()
def get_epoch():
    mksrd(sX,pDBG,256); I(f"v_mov_b32 v{vT1}, 0")
    poll(lambda: I(f"buffer_load_dword v{vT2}, v{vT1}, {srd(sX)}, 0 offen sc1"),[],lambda: I(f"v_cmp_eq_u32 vcc, 0, v{vT2}"))
    I(f"v_readfirstlane_b32 s{sEP}, v{vT2}")
gemm(0,8,"tr",vTRA,0,True,side=side1)
if DBG&8: stamp()
w7(get_epoch)
E.wait_vm("fa2"); bar(False)
w7(lambda: flag_put(0))
if DBG&8: stamp()
gemm(8,8,"tr",vTRB,0,False,side=dma_tr(SA,sWQ,512,sFB,0,"fb1"))
bar(False)
if DBG&8: stamp()
E.bg+=dma_tr(SB,sWQ,512,sFB,128*512,"fb2"); E.bgk=80; E.bgc=80
hid_out()
E.flush()
if DBG&8: stamp()
E.wait_vm("pt")
for q in range(4): I(f"v_lshl_or_b32 v{PT+q}, v{PT+17+2*q}, 16, v{PT+16+2*q}")
I(f"buffer_store_dwordx4 {v(PT,4)}, v{vL16}, {srd(sWS)}, s34 offen sc1","pts")
dwjob(); rs2()
I(f"s_mul_i32 s{sT2}, s{sB}, 512000")
I(f"s_add_u32 s{sO}, s{pOUT}, s{sT2}"); I(f"s_addc_u32 s{sO+1}, s{pOUT+1}, 0"); I(f"s_mov_b32 s{sO+2}, 512000")
E.wait_vm("fb1"); bar()
stamp()
gemm(0,8,"tr",vTRA,16384,True)
def clus():
    flag_wait(16,False)
    I(f"v_and_b32 v{vT2}, 31, v{RB+1}"); I(f"v_cmp_ne_u32 vcc, s{sXCC}, v{vT2}"); I("s_cmp_eq_u64 vcc, 0"); I(f"s_cselect_b32 s{sT0}, 1, 0")
    I(f"v_mov_b32 v{vT2}, s{sT0}"); I(f"v_mov_b32 v{vT1}, {ACT}"); I(f"ds_write_b32 v{vT1}, v{vT2}"); I("s_waitcnt lgkmcnt(0)")
w7(clus)
E.wait_vm("fb2"); bar(False)
I(f"v_mov_b32 v{vT1}, {ACT}"); I(f"ds_read_b32 v{vT3}, v{vT1}")
gemm(8,8,"tr",vTRB,16384,False,side=dma_tr(SA,sW,1536,sQ,0,"q1"))
stamp()
I(f"v_readfirstlane_b32 s{sFAST}, v{vT3}"); I(f"s_cmp_lg_u32 s{sFAST}, 0")
lf=E.newlab(); I(f"s_cbranch_scc1 {lf}"); tb=E.mark(); E.cond+=1
reset_local(" sc1"); E.wait_vm0(); I("s_barrier")
w7(lambda: (I(f"s_or_b32 s{sXCC}, s{sXCC}, 32"), flag_put(0), flag_wait(32,False)))
I("s_barrier")
E.cond-=1; E.join(lf,tb)
exch_pub()
E.wait_vm("rst"); bar(False)
q2=dma_tr(SB,sW,1536,sQ,128*1536,"q2")
exch_get(False,RB,q2)
stamp()
dump(X)
def wt_touch():
    I(f"s_and_b32 s{sT0}, s{sWG}, 31"); I(f"s_mul_i32 s{sT0}, s{sT0}, 49152"); I(f"s_add_u32 s{sT0}, s{sT0}, s{sW13}"); I(f"s_add_u32 s{sT0}, s{sT0}, {WTA}")
    I(f"s_cmp_ge_u32 s{sWv}, 6"); I(f"s_cselect_b32 s{sT0}, 0x70000000, s{sT0}"); E.flush()
    I(f"v_lshlrev_b32 v{vT3}, 7, v{vLANE}"); I(f"buffer_load_dword v250, v{vT3}, {srd(sWS)}, s{sT0} offen sc1","pf")
ln_to_act(E.flush)
E.wait_vm("q2"); bar()
l_sw=E.newlab(); l_end=E.newlab()
w7(lambda: flag_wait(64,True))
I(f"s_cmp_ge_u32 s{sWv}, 6"); I(f"s_cbranch_scc1 {l_end}"); tb0=E.mark(); E.cond+=1
I(f"s_cmp_ge_u32 s{sWv}, 4"); I(f"s_cbranch_scc1 {l_sw}"); tb1=E.mark()
gemm(0,8,"tr",vTRA,0,True); gemm(8,8,"tr",vTRB,0,False,ring=RB)
I(f"s_branch {l_end}"); tb2=E.mark()
E.join(l_sw,tb1)
gemm(0,8,"tr",vTRA,0,True,swap=True); gemm(8,8,"tr",vTRB,0,False,swap=True,ring=RB)
E.cond-=1; E.join(l_end,tb2)
pack16(ACC,T)
l1=E.newlab(); l2=E.newlab()
I(f"s_cmp_ge_u32 s{sWv}, 2"); I(f"s_cbranch_scc1 {l1}"); tb=E.mark()
I(f"ds_write_b128 v{vACTW}, {v(T,4)} offset:{QF-ACT}"); I(f"ds_write_b128 v{vACTW}, {v(T+4,4)} offset:{QF-ACT+1024}")
I(f"s_branch {l2}"); tb2=E.mark()
E.join(l1,tb); E.cond+=1
I(f"s_cmp_ge_u32 s{sWv}, 6"); I(f"s_cbranch_scc1 {l2}")
I(f"s_lshl_b32 s{sT1}, s{sWv}, 11"); I(f"s_add_u32 s{sT0}, s{sKVo}, s{sT1}"); I(f"s_sub_u32 s{sT0}, s{sT0}, 4096")
I(f"buffer_store_dwordx4 {v(T,4)}, v{vL16}, {srd(sWS)}, s{sT0} offen sc1")
I(f"buffer_store_dwordx4 {v(T+4,4)}, v{vL16}, {srd(sWS)}, s{sT0} offen offset:1024 sc1")
E.cond-=1; E.join(l2,tb)
I(f"v_mov_b32 v{vT0}, {RFL}"); I(f"v_mov_b32 v{vT1}, 0"); I(f"ds_write_b32 v{vT0}, v{vT1}")
I(f"s_movk_i32 s35, 64")
I(f"s_lshl_b32 s{sFB}, s{sWv}, 14")
I(f"s_lshl_b32 s{sT0}, s{sS}, 17"); I(f"s_add_u32 s{sQ}, s{sFB}, s{sT0}")
I(f"s_lshl_b32 s{sT0}, s{sS}, 16"); I(f"s_add_u32 s34, s{sW13}, s{sT0}")
bar()
stamp()
I(f"s_and_b32 s{sT0}, s{sWG}, 31"); I(f"s_lshl_b32 s{sT0}, s{sT0}, 14"); I(f"s_lshl_b32 s{sT1}, s{sWv}, 11"); I(f"s_add_u32 s{sT0}, s{sT0}, s{sT1}"); I(f"s_add_u32 s{sT0}, s{sT0}, {WTP}")
I(f"v_and_b32 v{vT3}, 15, v{vLANE}"); I(f"v_lshlrev_b32 v{vT3}, 7, v{vT3}"); I(f"buffer_load_dword v{vDMA}, v{vT3}, {srd(sWS)}, s{sT0} offen sc1","pf")
run(dma_lin(SA,34,WTP,"p1"))
KF=RA; VF=RB; SS=RC; QR=ACC; OO=ACC
E.label("L_att"); E.nop(2)
for ks in range(4): I(f"ds_read_b128 {v(QR+4*ks,4)}, v{vACTR} offset:{QF-ACT+ks*1024}")
I(f"v_and_b32 v{vT1}, 31, v{vLANE}"); I(f"v_lshlrev_b32 v{vT1}, 10, v{vT1}"); I(f"v_lshrrev_b32 v{vT2}, 5, v{vLANE}"); I(f"v_lshl_or_b32 v{vT1}, v{vT2}, 9, v{vT1}")
if ROT: I(f"s_and_b32 s{sT0}, s{sR}, 7"); I(f"s_lshl_b32 s{sT0}, s{sT0}, 7"); I(f"v_xor_b32 v{vT1}, s{sT0}, v{vT1}")
poll(lambda: I(f"buffer_load_dword v{vT2}, v{vT1}, {srd(sWS)}, s{sKV} offen offset:124 sc1"),[vT2])
stamp()
def kvl(part,base,j):
    I(f"s_add_u32 s{sT0}, s{sKV}, {j*8192+part*4096}")
    for f in range(4): I(f"buffer_load_dwordx4 {v(base+16*j+4*f,4)}, v{vL16}, {srd(sWS)}, s{sT0} offen offset:{1024*f} sc1",f"kv{part}{j}")
for j in range(4): kvl(0,KF,j)
I("s_waitcnt lgkmcnt(0)")
for j in range(4):
    E.wait_vm(f"kv0{j}")
    for ks in range(4):
        I(f"v_mfma_f32_32x32x16_bf16 {v(SS+16*j,16)}, {v(KF+16*j+4*ks,4)}, {v(QR+4*ks,4)}, {'0' if ks==0 else v(SS+16*j,16)}")
    kvl(1,VF,j)
I(f"s_and_b32 s{sT0}, s{sWG}, 31"); I(f"s_lshl_b32 s{sT0}, s{sT0}, 15"); I(f"s_lshl_b32 s{sT1}, s{sWv}, 12"); I(f"s_add_u32 s{sT0}, s{sT0}, s{sT1}"); I(f"s_add_u32 s{sT0}, s{sT0}, {WTA}")
I(f"v_and_b32 v{vT3}, 31, v{vLANE}"); I(f"v_lshlrev_b32 v{vT3}, 7, v{vT3}"); I(f"buffer_load_dword v{vDMA}, v{vT3}, {srd(sWS)}, s{sT0} offen sc1","pf")
stamp()
I(f"v_max3_f32 v{vT0}, v{SS}, v{SS+1}, v{SS+2}"); I(f"v_max_f32 v{vT1}, v{SS+3}, v{SS+4}")
for i in range(5,45,4):
    I(f"v_max3_f32 v{vT0}, v{vT0}, v{SS+i}, v{SS+i+1}"); I(f"v_max3_f32 v{vT1}, v{vT1}, v{SS+i+2}, v{SS+i+3}")
lab=E.newlab()
I(f"s_cmp_lg_u32 s{sWv}, 7"); I(f"s_cbranch_scc1 {lab}"); tb=E.mark(); E.cond+=1
for r in range(4,16): I(f"v_mov_b32 v{SS+48+r}, 0xff800000")
E.cond-=1; E.join(lab,tb)
for i in range(45,63,4):
    I(f"v_max3_f32 v{vT0}, v{vT0}, v{SS+i}, v{SS+i+1}")
    if i+3<64: I(f"v_max3_f32 v{vT1}, v{vT1}, v{SS+i+2}, v{SS+i+3}")
I(f"v_max3_f32 v{vT0}, v{vT0}, v{vT1}, v{SS+63}")
I(f"v_mov_b32 v{vT1}, v{vT0}"); setC("0x3e38aa3b"); I(f"v_permlane32_swap_b32 v{vT0}, v{vT1}"); I(f"v_max_f32 v{vT0}, v{vT0}, v{vT1}")
I(f"v_mul_f32 v{vT2}, s{sC}, v{vT0}")
SUM=vT0
for j in range(4):
    S=SS+16*j
    if j==WOJ: E.bg+=ld_frags(RA,sFB,WTO,"wo"); E.bgc=0; E.bgk=90
    for i in range(0,16,2): I(f"v_pk_fma_f32 {v(S+i,2)}, {v(S+i,2)}, s[{sC}:{sC+1}], {v(vT2,2)} op_sel_hi:[1,1,0] neg_lo:[0,0,1] neg_hi:[0,0,1]")
    for i in range(16): I(f"v_exp_f32 v{S+i}, v{S+i}")
    for i in range(0,16,2):
        if j==0 and i==0: continue
        if j==0 and i==2: I(f"v_pk_add_f32 {v(SUM,2)}, {v(S,2)}, {v(S+2,2)}")
        else: I(f"v_pk_add_f32 {v(SUM,2)}, {v(SUM,2)}, {v(S+i,2)}")
    for i in range(8): I(f"v_cvt_pk_bf16_f32 v{S+i}, v{S+2*i}, v{S+2*i+1}")
    E.wait_vm(f"kv1{j}")
    for u in range(2):
        for dt in range(2):
            I(f"v_mfma_f32_32x32x16_bf16 {v(OO+16*dt,16)}, {v(VF+16*j+8*dt+4*u,4)}, {v(S+4*u,4)}, {'0' if (j==0 and u==0) else v(OO+16*dt,16)}")
I(f"v_add_f32 v{vT1}, v{vT0}, v{vT1}")
I(f"v_mov_b32 v{vT3}, v{vT1}"); I(f"v_cmp_gt_u32 vcc, 32, v{vLANE}"); I(f"v_permlane32_swap_b32 v{vT1}, v{vT3}"); I(f"v_add_f32 v{vT1}, v{vT1}, v{vT3}")
I(f"v_cndmask_b32 v{vT1}, v{vT1}, v{vT2}, vcc")
I(f"ds_write_b32 v{vSTW}, v{vT1} offset:{MST-STATS}")
I(f"s_add_u32 s{sT0}, s{sW13}, {SB}"); I(f"v_add_u32 v{vT0}, s{sT0}, v{vL16}")
for q in range(8): I(f"ds_write_b128 v{vT0}, {v(OO+4*q,4)} offset:{q*1024}")
E.flush()
I(f"v_and_b32 v{vT1}, 31, v{vLANE}"); I(f"v_lshlrev_b32 v{vT1}, 4, v{vT1}"); I(f"s_lshl_b32 s{sT0}, s{sS}, 12"); I(f"s_add_u32 s{sT0}, s{sT0}, {DWP}")
for q in range(8): I(f"buffer_load_dwordx4 {v(WE+4*q,4)}, v{vT1}, {srd(sWS)}, s{sT0} offen offset:{512*q}","dw")
bar()
stamp()
lg=E.newlab(); lnan=E.newlab()
I(f"s_cmp_ge_u32 s{sWv}, 4"); I(f"s_cbranch_scc1 {lg}"); tb=E.mark(); E.cond+=1
I(f"v_and_b32 v{vT0}, 31, v{vLANE}"); I(f"v_lshlrev_b32 v{vT0}, 2, v{vT0}"); I(f"v_add_u32 v{vT0}, {MST}, v{vT0}"); I(f"v_add_u32 v{vT1}, 128, v{vT0}")
MM=T; LL=T+8; MG=RB
for i in range(4): I(f"ds_read2st64_b32 {v(MM+2*i,2)}, v{vT0} offset0:{2*i} offset1:{2*i+1}")
for i in range(4): I(f"ds_read2st64_b32 {v(LL+2*i,2)}, v{vT1} offset0:{2*i} offset1:{2*i+1}")
I(f"v_add_u32 v{vT2}, {SB-ACT}, v{vACTW}")
for w in range(8):
    for i in range(2): I(f"ds_read_b128 {v(MG+8*w+4*i,4)}, v{vT2} offset:{w*8192+i*1024}")
I("s_waitcnt lgkmcnt(15)")
I(f"v_max3_f32 v{vT0}, v{MM}, v{MM+1}, v{MM+2}"); I(f"v_max3_f32 v{vT1}, v{MM+3}, v{MM+4}, v{MM+5}"); I(f"v_max3_f32 v{vT0}, v{vT0}, v{MM+6}, v{MM+7}"); I(f"v_max_f32 v{vT0}, v{vT0}, v{vT1}")
for i in range(0,8,2): I(f"v_pk_add_f32 {v(MM+i,2)}, {v(MM+i,2)}, {v(vT0,2)} op_sel_hi:[1,0] neg_lo:[0,1] neg_hi:[0,1]")
for i in range(8): I(f"v_exp_f32 v{MM+i}, v{MM+i}")
I(f"v_pk_mul_f32 {v(vT0,2)}, {v(MM,2)}, {v(LL,2)}")
for i in range(2,8,2): I(f"v_pk_fma_f32 {v(vT0,2)}, {v(MM+i,2)}, {v(LL+i,2)}, {v(vT0,2)}")
I(f"v_add_f32 v{vT0}, v{vT0}, v{vT1}"); I(f"v_rcp_f32 v{vT0}, v{vT0}")
I("s_waitcnt lgkmcnt(0)")
for w in range(8):
    sel="op_sel:[0,1,0] op_sel_hi:[1,1,1]" if w&1 else "op_sel_hi:[1,0,1]"
    for i in range(4):
        if w==0: I(f"v_pk_mul_f32 {v(ACC+2*i,2)}, {v(MG+2*i,2)}, {v(MM,2)} op_sel_hi:[1,0]")
        else: I(f"v_pk_fma_f32 {v(ACC+2*i,2)}, {v(MG+8*w+2*i,2)}, {v(MM+(w&~1),2)}, {v(ACC+2*i,2)} {sel}")
for i in range(4): I(f"v_pk_mul_f32 {v(ACC+2*i,2)}, {v(ACC+2*i,2)}, {v(vT0,2)} op_sel_hi:[1,0]")
for i in range(4): I(f"v_cvt_pk_bf16_f32 v{LL+i}, v{ACC+2*i}, v{ACC+2*i+1}")
I(f"v_pk_add_f32 {v(vT0,2)}, {v(ACC,2)}, {v(ACC+2,2)}"); I(f"v_pk_add_f32 {v(vT2,2)}, {v(ACC+4,2)}, {v(ACC+6,2)}"); I(f"v_pk_add_f32 {v(vT0,2)}, {v(vT0,2)}, {v(vT2,2)}")
I(f"v_cmp_u_f32 vcc, v{vT0}, v{vT1}")
I(f"s_cmp_eq_u32 s35, 0"); I(f"s_cselect_b64 vcc, 0, vcc"); I(f"s_cmp_lg_u64 vcc, 0"); I(f"s_cbranch_scc1 {lnan}"); tbn=E.mark()
I(f"s_add_u32 s{sT0}, s{sX4}, {E3}")
pub([f"buffer_store_dwordx4 {v(LL,4)}, v{vL16}, {srd(sWS)}, s{sT0} offen"])
I(f"s_and_b32 s{sT0}, s{sT0}, 0x3fff"); I(f"v_add_u32 v{vT0}, s{sT0}, v{vACTR}")
I(f"ds_write_b128 v{vT0}, {v(LL,4)}")
I(f"s_branch {lg}")
E.join(lnan,tbn)
I(f"v_mov_b32 v{vT0}, {RFL}"); I(f"v_mov_b32 v{vT1}, s35"); I(f"ds_write_b32 v{vT0}, v{vT1}")
E.cond-=1; E.join(lg,tb); E.nop(2)
bar()
I(f"v_mov_b32 v{vT0}, {RFL}"); I(f"ds_read_b32 v{vT1}, v{vT0}"); I("s_waitcnt lgkmcnt(0)"); I(f"v_readfirstlane_b32 s{sT0}, v{vT1}")
I(f"s_cmp_eq_u32 s{sT0}, s35"); I(f"s_cselect_b32 s{sT0}, 1, 0"); I(f"s_sub_u32 s35, s35, s{sT0}"); I(f"s_cmp_lg_u32 s{sT0}, 0"); I("s_cbranch_scc1 L_att")
lg=E.newlab()
I(f"s_cmp_lt_u32 s{sWv}, 4"); I(f"s_cbranch_scc1 {lg}"); tb=E.mark(); E.cond+=1
I(f"s_add_u32 s{sT0}, s{sX4}, {E3-4096}")
I(f"s_xor_b32 s{sT1}, s{sT0}, 0x1000"); I(f"s_xor_b32 s{sT2}, s{sT0}, 0x2000"); I(f"s_xor_b32 s{sT3}, s{sT0}, 0x3000")
def e3loads():
    for k,sr in enumerate((sT1,sT2,sT3)): I(f"buffer_load_dwordx4 {v(RB+4*k,4)}, v{vL16}, {srd(sWS)}, s{sr} offen sc1")
poll(e3loads,list(range(RB,RB+12)))
for k,sr in enumerate((sT1,sT2,sT3)):
    I(f"s_and_b32 s{sr}, s{sr}, 0x3fff"); I(f"v_add_u32 v{vT0}, s{sr}, v{vACTR}"); I(f"ds_write_b128 v{vT0}, {v(RB+4*k,4)}")
E.cond-=1; E.join(lg,tb)
bar()
stamp()
E.bg+=ld_frags(RB,sFB,WTO+131072,"c"); E.bgc=100; E.bgk=140
gemm(0,16,"reg",RA,0,True,ring=RC,depth=7,atag="wo")
E.bg+=ld_frags(RA,sQ,WTA,"ga")+dma_lin(SB,sQ,WTB,"gb1")
addX()
dump(X)
l1=E.newlab(); l2=E.newlab()
I(f"s_cmp_eq_u32 s{sFAST}, 0"); I(f"s_cbranch_scc1 {l1}"); tb=E.mark(); E.cond+=1
reset_local("",False,ACC); I(f"s_branch {l2}"); tb2=E.mark(); E.join(l1,tb); reset_local(" sc1",False,ACC); E.cond-=1; E.join(l2,tb2)
ln_to_act()
E.flush(4)
bar()
stamp()
lg=E.newlab(); le=E.newlab()
I(f"v_and_b32 v{vT3}, 31, v{vLANE}")
I(f"s_cmp_ge_u32 s{sWv}, 4"); I(f"s_cbranch_scc1 {lg}"); tb=E.mark(); E.cond+=1
I(f"v_add_u32 v{vDMA}, s{sFB}, v{vL16}")
gemm(0,16,"lds",vDMA,0,True,ring=RC,depth=3)
setC(NLOG2E)
for i in range(0,8,2): I(f"v_pk_mul_f32 {v(T+i,2)}, {v(ACC+8+i,2)}, s[{sC}:{sC+1}]")
for i in range(8): I(f"v_exp_f32 v{T+i}, v{T+i}")
for i in range(0,8,2): I(f"v_pk_add_f32 {v(T+i,2)}, {v(T+i,2)}, 1.0 op_sel_hi:[1,0]")
for i in range(8): I(f"v_rcp_f32 v{T+i}, v{T+i}")
I(f"s_lshl_b32 s{sT0}, s{sR}, 5"); I(f"v_add_u32 v{vT0}, s{sT0}, v{vT3}"); I(f"v_cmp_gt_u32 vcc, 1000, v{vT0}")
for i in range(0,8,2): I(f"v_pk_mul_f32 {v(T+i,2)}, {v(ACC+i,2)}, {v(T+i,2)}")
for i in range(4): I(f"v_cvt_pk_bf16_f32 v{T+i}, v{T+2*i}, v{T+2*i+1}")
for i in range(4): I(f"v_cndmask_b32 v{T+i}, 0, v{T+i}, vcc")
I(f"s_add_u32 s{sT0}, s{sX4}, {E4}")
I(f"buffer_store_dwordx4 {v(T,4)}, v{vL16}, {srd(sWS)}, s{sT0} offen sc1")
I(f"v_add_u32 v{vT3}, 16, v{vT3}")
I(f"s_branch {le}"); tb2=E.mark()
E.join(lg,tb)
I(f"s_add_u32 s{sT1}, s{sX4}, {E4-4096-0x4000}")
I(f"v_xor_b32 v{vT1}, 0x100, v{vL16}"); I(f"v_bfe_u32 v{vT2}, v{vLANE}, 4, 1"); I(f"v_lshl_or_b32 v{vT1}, v{vT2}, 15, v{vT1}")
I(f"v_lshl_add_u32 v{vT3}, v{vT2}, 5, v{vT3}")
I(f"v_mul_u32_u24 v{vT2}, 31, v{vT2}"); I(f"v_cmp_eq_u32 vcc, s{sR}, v{vT2}"); I(f"v_mov_b32 v{vT2}, 0x7ffffff0"); I(f"v_cndmask_b32 v{vT1}, v{vT1}, v{vT2}, vcc")
poll(lambda: I(f"buffer_load_dwordx4 {v(T,4)}, v{vT1}, {srd(sWS)}, s{sT1} offen sc1"),list(range(T,T+4)))
E.cond-=1; E.join(le,tb2)
I(f"v_mul_u32_u24 v{vT3}, 144, v{vT3}"); I(f"v_lshrrev_b32 v{vT0}, 5, v{vLANE}"); I(f"v_lshl_add_u32 v{vT3}, v{vT0}, 4, v{vT3}")
I(f"s_and_b32 s{sT0}, s{sWv}, 3"); I(f"s_lshl_b32 s{sT0}, s{sT0}, 5"); I(f"s_add_u32 s{sT0}, s{sT0}, {HIM}"); I(f"v_add_u32 v{vT3}, s{sT0}, v{vT3}")
I(f"ds_write_b128 v{vT3}, {v(T,4)}")
I(f"v_mul_u32_u24 v{vT0}, 144, v{vT0}"); I(f"v_and_b32 v{vT1}, 31, v{vLANE}"); I(f"v_lshl_add_u32 v{vT0}, v{vT1}, 2, v{vT0}")
I(f"s_mul_i32 s{sT0}, s{sWv}, 576"); I(f"s_add_u32 s{sT0}, s{sT0}, {HIM+144}")
AD=ACC+8
for b_ in range(5):
    I(f"s_add_u32 s{sT1}, s{sT0}, {b_*8*144}"); I(f"v_add_u32 v{AD+b_}, s{sT1}, v{vT0}")
for i in range(4): I(f"v_mov_b32 v{ACC+i}, 0")
I(f"s_mov_b32 s{sT2}, 0x05040100"); I(f"s_mov_b32 s{sT3}, 0x07060302")
E.wait_vm0()
bar()
stamp()
rw=lambda k: RC+2*k if k<16 else ACC+4
lo_=lambda k: T+k if k<16 else ACC+6
for k in range(17): I(f"ds_read2_b32 {v(rw(k),2)}, v{AD+k//4} offset0:{72*(k%4)} offset1:{72*(k%4)+36}")
for k in range(17):
    I(f"s_waitcnt lgkmcnt({min(15,16-k)})")
    I(f"v_perm_b32 v{lo_(k)}, v{rw(k)+1}, v{rw(k)}, s{sT2}"); I(f"v_perm_b32 v{rw(k)+1}, v{rw(k)+1}, v{rw(k)}, s{sT3}")
for m in range(16):
    for u in range(2):
        I(f"v_dot2c_f32_bf16 v{ACC+2*u}, v{lo_(m+u)}, v{WE+m}"); I(f"v_dot2c_f32_bf16 v{ACC+2*u+1}, v{rw(m+u)+1}, v{WE+16+m}")
setC(NLOG2E); silu(ACC,4,T)
I(f"v_cvt_pk_bf16_f32 v{T}, v{ACC}, v{ACC+1}"); I(f"v_cvt_pk_bf16_f32 v{T+1}, v{ACC+2}, v{ACC+3}")
I(f"v_bfe_u32 v{vT0}, v{vLANE}, 2, 3"); I(f"v_lshlrev_b32 v{vT0}, 9, v{vT0}"); I(f"v_lshrrev_b32 v{vT1}, 5, v{vLANE}"); I(f"v_lshl_or_b32 v{vT0}, v{vT1}, 4, v{vT0}")
I(f"v_and_b32 v{vT1}, 3, v{vLANE}"); I(f"v_lshl_or_b32 v{vT0}, v{vT1}, 2, v{vT0}")
I(f"s_lshl_b32 s{sT0}, s{sWG}, 12"); I(f"s_lshl_b32 s{sT1}, s{sWv}, 6"); I(f"s_add_u32 s{sT0}, s{sT0}, s{sT1}"); I(f"s_add_u32 s{sT0}, s{sT0}, {E5}")
pub([f"buffer_store_dword v{T}, v{vT0}, {srd(sWS)}, s{sT0} offen", f"buffer_store_dword v{T+1}, v{vT0}, {srd(sWS)}, s{sT0} offen offset:32"])
I(f"s_lshl_b32 s{sT0}, s{sTile}, 14"); I(f"s_lshl_b32 s{sT1}, s{sWv}, 11"); I(f"s_add_u32 s{sT0}, s{sT0}, s{sT1}"); I(f"s_add_u32 s{sT0}, s{sT0}, {E5}")
def e5loads():
    for i in range(2): I(f"buffer_load_dwordx4 {v(T+4*i,4)}, v{vL16}, {srd(sWS)}, s{sT0} offen offset:{1024*i} sc1")
poll(e5loads,list(range(T,T+8)))
I(f"ds_write_b128 v{vACTW}, {v(T,4)}"); I(f"ds_write_b128 v{vACTW}, {v(T+4,4)} offset:1024")
bar()
stamp()
E.bg+=dma_lin(SA,sQ,WTB+8192,"gb2"); E.bgk=100
assert len(E.bg)<=32, len(E.bg)
gemm(0,16,"reg",RB,0,True,ring=RC,depth=7)
addX()
dump(X)
ln_to_act()
print("bg left before ffn2a",len(E.bg)); E.flush(max(0,len(E.bg)-16))
bar()
stamp()
gemm(0,16,"reg",RA,0,True,ring=RC,depth=7,atag="ga")
hid_out()
E.flush()
I(f"v_add_u32 v{vDMA}, s{sW13}, v{vL16}"); I(f"v_add_u32 v{vT3}, {SB}, v{vDMA}")
E.wait_vm0(); bar()
gemm(0,8,"lds",vT3,16384,True,ring=RC,depth=5)
gemm(8,8,"lds",vDMA,16384,False,ring=RA,depth=5)
stamp()
exch_pub()
exch_get(True,RB)
stamp()
bar(False)
ln_stats(); ln_apply(T); pack16(T,T)
I(f"v_bfe_u32 v{vT1}, v{vLANE}, 3, 2"); I(f"v_cmp_eq_u32 vcc, s{sS}, v{vT1}"); I(f"v_mov_b32 v{vT1}, 0x7ffffff0"); I(f"v_cndmask_b32 v{vT1}, v{vT1}, v{vXOFF}, vcc")
I(f"s_lshl_b32 s{sT3}, s{sR}, 14")
for g in range(2):
    I(f"v_permlane32_swap_b32 v{T+4*g}, v{T+4*g+2}"); I(f"v_permlane32_swap_b32 v{T+4*g+1}, v{T+4*g+3}")
    I(f"buffer_store_dwordx4 {v(T+4*g,4)}, v{vT1}, {srd(sO)}, s{sT3} offen offset:{32*g}")
stamp()
if DBG&1:
    I(f"s_lshl_b32 s{sT0}, s{sWG}, 10"); I(f"s_lshl_b32 s{sT1}, s{sWv}, 7"); I(f"s_add_u32 s{sT0}, s{sT0}, s{sT1}"); I(f"s_add_u32 s{sT0}, s{sT0}, {TS}")
    I(f"v_mov_b32 v{vT1}, 0")
    for i in range(nts[0]):
        I(f"v_mov_b32 v{vT0}, s{sTS+i}"); I(f"buffer_store_dword v{vT0}, v{vT1}, {srd(sWS)}, s{sT0} offen offset:{4*i}")
    assert sTS+nts[0]<=100, nts
E.label("L_end"); I("s_endpgm")

hdr=open("standalone__conformer_family_zipformer__speech.s.ref").read().split("; Override")[0]
out=hdr+"; @launch grid=(256,1,1) block=(512,1,1) lds=163840\n"
out+=f'.amdgcn_target "amdgcn-amd-amdhsa--gfx950"\n.text\n.globl {KN}\n.p2align 8\n.type {KN},@function\n{KN}:\n'
out+="\n".join(E.L)+"\n"
out+=f'''.section .rodata,"a"
.p2align 6
.amdhsa_kernel {KN}
  .amdhsa_next_free_vgpr 256
  .amdhsa_next_free_sgpr 102
  .amdhsa_accum_offset 256
  .amdhsa_group_segment_fixed_size 0
  .amdhsa_kernarg_size 104
  .amdhsa_user_sgpr_count 2
  .amdhsa_user_sgpr_kernarg_segment_ptr 1
  .amdhsa_system_sgpr_workgroup_id_x 1
.end_amdhsa_kernel
'''
open(sys.argv[1],"w").write(out)
print("instrs",len(E.L),"stamps",nts[0],"dumps",ndump[0])
```

```python
import sys
from emit import Emit
DBG = int(sys.argv[2]) if len(sys.argv)>2 else 0
E=Emit(); I=E.I
KN="standalone__conformer_family_zipformer__speech_kernel"
SA=0; SB=65536; ACT=131072; AUX=147456; STATS=AUX; QF=AUX+4096; MST=AUX+8192; HIM=AUX+4096; RFL=AUX+13312
E1=0; KV=0x400000; E3=0x600000; E4=0x700000; E5=0x800000; WTO=0x900000; WTB=0x940000; DWP=0xA80000; FL=0xB00000; DUMP=0x1000000; TS=0x3000000
pX,pW1a,pW1b,pQKV,pWO,pPW1,pDW,pPW2,pW2a,pW2b,pOUT,pDBG,pWS=[8+2*i for i in range(13)]
sX,sO,sWS,sW,sD=36,40,44,48,52
sS,sTile,sB,sR,sWv=56,57,58,59,60
sT0,sT1,sT2,sT3,sCnt=61,62,63,3,4
sC=6
sWG=5
sXCC=64; sFAST=65; sE1=66; sX4=67; sKV=68; sKVo=69; sFB=70; sQ=71; sW13=72; sW10=73; sBG0=74; sBG1=75; sWQ=76; sEP=52; sTS=80
def srd(n): return f"s[{n}:{n+3}]"
vTID,vLANE,vL16,vTRA,vTRB,vDMA,vC16,vACTW,vACTR,vSTW,vSTR,vXOFF,vT0,vT1,vT2,vT3=range(16)
X=16; ACC=32; T=48; G=64; RA=64; RB=128; RC=192; WE=224
def v(n,k=1): return f"v{n}" if k==1 else f"v[{n}:{n+k-1}]"
nts=[0]
def stamp():
    if DBG&1 and nts[0]<20:
        I("s_memtime s[100:101]" if DBG&4 else "s_memrealtime s[100:101]"); I("s_waitcnt lgkmcnt(0)"); I(f"s_mov_b32 s{sTS+nts[0]}, s100"); nts[0]+=1
ndump=[0]
def dump(reg,n=16):
    if DBG&2:
        i=ndump[0]; ndump[0]+=1
        I(f"s_lshl_b32 s{sT0}, s{sWG}, 15"); I(f"s_lshl_b32 s{sT1}, s{sWv}, 12"); I(f"s_add_u32 s{sT0}, s{sT0}, s{sT1}")
        I(f"s_add_u32 s{sT0}, s{sT0}, {DUMP+i*(1<<23)}")
        for q in range(n//4):
            I(f"buffer_store_dwordx4 {v(reg+4*q,4)}, v{vL16}, {srd(sWS)}, s{sT0} offen offset:{q*1024}")
        E.wait_vm0()
def setW(p,nbytes):
    I(f"s_mov_b32 s{sW}, s{p}"); I(f"s_mov_b32 s{sW+1}, s{p+1}"); I(f"s_mov_b32 s{sW+2}, {nbytes}")
def bar(lgkm=True):
    if lgkm: I("s_waitcnt lgkmcnt(0)")
    I("s_barrier")

def pack16(src,dst):
    for i in range(8): I(f"v_cvt_pk_bf16_f32 v{dst+i}, v{src+2*i}, v{src+2*i+1}")

def ln_stats(after_bar=None):
    I(f"v_pk_mul_f32 {v(T,2)}, {v(X,2)}, {v(X,2)}")
    I(f"v_pk_add_f32 {v(T+2,2)}, {v(X,2)}, {v(X+2,2)}")
    for i in range(1,8): I(f"v_pk_fma_f32 {v(T,2)}, {v(X+2*i,2)}, {v(X+2*i,2)}, {v(T,2)}")
    for i in range(2,8): I(f"v_pk_add_f32 {v(T+2,2)}, {v(T+2,2)}, {v(X+2*i,2)}")
    I(f"v_add_f32 v{vT1}, v{T}, v{T+1}")
    I(f"v_add_f32 v{vT0}, v{T+2}, v{T+3}")
    I(f"v_permlane32_swap_b32 v{vT0}, v{vT1}")
    I(f"v_add_f32 v{vT0}, v{vT0}, v{vT1}")
    I(f"ds_write_b32 v{vSTW}, v{vT0}")
    bar()
    for i in range(4): I(f"ds_read2st64_b32 {v(T+2*i,2)}, v{vSTR} offset0:{2*i} offset1:{2*i+1}")
    if after_bar: after_bar()
    I("s_waitcnt lgkmcnt(0)")
    I(f"v_pk_add_f32 {v(T,2)}, {v(T,2)}, {v(T+2,2)}")
    I(f"v_pk_add_f32 {v(T+4,2)}, {v(T+4,2)}, {v(T+6,2)}")
    I(f"v_pk_add_f32 {v(T,2)}, {v(T,2)}, {v(T+4,2)}")
    I(f"v_add_f32 v{vT0}, v{T}, v{T+1}")
    I(f"v_mul_f32 v{vT0}, 0x3b800000, v{vT0}")
    I(f"v_mov_b32 v{vT1}, v{vT0}")
    I(f"v_permlane32_swap_b32 v{vT0}, v{vT1}")
    I(f"v_fma_f32 v{vT1}, -v{vT0}, v{vT0}, v{vT1}")
    I(f"v_max_f32 v{vT1}, 0, v{vT1}")
    I(f"v_add_f32 v{vT1}, 0x3727c5ac, v{vT1}")
    I(f"v_rsq_f32 v{vT2}, v{vT1}")
    I(f"v_mul_f32 v{vT3}, -v{vT0}, v{vT2}" if False else f"v_mul_f32_e64 v{vT3}, -v{vT0}, v{vT2}")
def ln_apply(dst):
    for i in range(8):
        I(f"v_pk_fma_f32 {v(dst+2*i,2)}, {v(X+2*i,2)}, {v(vT2,2)}, {v(vT2,2)} op_sel:[0,0,1] op_sel_hi:[1,0,1]")
def ln_to_act(after_bar=None):
    ln_stats(after_bar); ln_apply(T); pack16(T,T)
    I(f"ds_write_b128 v{vACTW}, {v(T,4)}"); I(f"ds_write_b128 v{vACTW}, {v(T+4,4)} offset:1024")

def silu(src,n,tmp):
    for i in range(0,n,2): I(f"v_pk_mul_f32 {v(tmp+i,2)}, {v(src+i,2)}, s[{sC}:{sC+1}]")
    for i in range(n): I(f"v_exp_f32 v{tmp+i}, v{tmp+i}")
    for i in range(0,n,2): I(f"v_pk_add_f32 {v(tmp+i,2)}, {v(tmp+i,2)}, 1.0 op_sel_hi:[1,0]")
    for i in range(n): I(f"v_rcp_f32 v{tmp+i}, v{tmp+i}")
    for i in range(0,n,2): I(f"v_pk_mul_f32 {v(src+i,2)}, {v(src+i,2)}, {v(tmp+i,2)}")
def setC(val):
    I(f"s_mov_b32 s{sC}, {val}"); I(f"s_mov_b32 s{sC+1}, {val}")
NLOG2E="0xbfb8aa3b"

def poll(loads,regs,valid_flags=False):
    top=E.newlab("P"); done=E.newlab("D"); sv=E.inbg; E.inbg=True
    I(f"s_movk_i32 s{sCnt}, 0x4000")
    E.nop(2); E.label(top)
    loads()
    E.wait_vm0()
    if valid_flags:
        valid_flags()
    else:
        r=list(regs); acc=None
        if len(r)==1: acc=r[0]
        else:
            acc=vT0
            if len(r)%2==1: I(f"v_max3_u32 v{acc}, v{r[0]}, v{r[1]}, v{r[2]}"); r=r[3:]
            else: I(f"v_max_u32 v{acc}, v{r[0]}, v{r[1]}"); r=r[2:]
            for i in range(0,len(r),2): I(f"v_max3_u32 v{acc}, v{acc}, v{r[i]}, v{r[i+1]}")
        I(f"v_cmp_eq_u32 vcc, -1, v{acc}")
    I(f"s_cbranch_vccz {done}")
    I("s_sleep 1")
    I(f"s_sub_u32 s{sCnt}, s{sCnt}, 1")
    I(f"s_cbranch_scc0 {top}")
    E.label(done); E.nop(2); E.inbg=sv

TLB=0; VD=int(sys.argv[6]) if len(sys.argv)>6 else 2; PTE=int(sys.argv[5]) if len(sys.argv)>5 else 0; WOJ=int(sys.argv[4]) if len(sys.argv)>4 else 2
ROT=int(sys.argv[3]) if len(sys.argv)>3 else 0
def dma_tr(slot,sr,stride,sbase,add,tag,q=False,setup=True):
    if setup: I(f"v_lshrrev_b32 v{vDMA}, 3, v{vLANE}"); I(f"v_mul_u32_u24 v{vDMA}, {stride}, v{vDMA}"); I(f"v_add_u32 v{vDMA}, v{vDMA}, v{vC16}")
    if q:
        pass
    def mk(i):
        def f():
            I(f"s_add_u32 m0, s{sW13}, {slot+1024*i}"); I(f"s_add_u32 s{sBG1}, s{sbase}, {add+8*stride*i}")
            I(f"buffer_load_dwordx4 v{vDMA}, {srd(sr)}, s{sBG1} offen lds",tag)
        return f
    return [mk(i) for i in range(8)]
def dma_lin(ldsbase,sgbase,add,tag,n=8):
    def mk(i):
        def f():
            if i%4==0:
                I(f"s_add_u32 m0, s{sW13}, {ldsbase+1024*i}"); I(f"s_add_u32 s{sBG1}, s{sgbase}, {add+1024*i}")
            I(f"buffer_load_dwordx4 v{vL16}, {srd(sWS)}, s{sBG1} offen offset:{1024*(i%4)} sc1 lds",tag)
        return f
    return [mk(i) for i in range(n)]
def ld_frags(dst,sgbase,add,tag,n=16,st=sBG0):
    def mk(i):
        def f():
            if i%4==0: I(f"s_add_u32 s{st}, s{sgbase}, {add+1024*i}")
            I(f"buffer_load_dwordx4 {v(dst+4*i,4)}, v{vL16}, {srd(sWS)}, s{st} offen offset:{1024*(i%4)} sc1",tag)
        return f
    return [mk(i) for i in range(n)]
def run(l):
    for f in l: f()

def gemm(ks0,nks,mode,a,boff,first,swap=False,ring=RA,depth=5,side=(),atag=None):
    per={"tr":3,"lds":2,"reg":1}[mode]; rs=4 if mode=="reg" else 8
    side=list(side)
    def rd(i):
        r=ring+rs*(i%(depth+1)); ks=ks0+i
        I(f"ds_read_b128 {v(r,4)}, v{vACTR} offset:{boff+ks*1024}")
        if mode=="tr":
            I(f"ds_read_b64_tr_b16 {v(r+4,2)}, v{a} offset:{i*2048}"); I(f"ds_read_b64_tr_b16 {v(r+6,2)}, v{a} offset:{i*2048+1024}")
        elif mode=="lds": I(f"ds_read_b128 {v(r+4,4)}, v{a} offset:{i*1024}")
    for i in range(min(depth,nks)): rd(i)
    if atag: E.wait_vm(atag)
    for i in range(nks):
        out=min(nks,i+depth)-(i+1)
        I(f"s_waitcnt lgkmcnt({per*out})")
        r=ring+rs*(i%(depth+1))
        A_=v(a+4*(ks0+i),4) if mode=="reg" else v(r+4,4); B_=v(r,4)
        if swap: A_,B_=B_,A_
        I(f"v_mfma_f32_32x32x16_bf16 {v(ACC,16)}, {A_}, {B_}, {'0' if (first and i==0) else v(ACC,16)}")
        if i+depth<nks: rd(i+depth)
        k=-(-len(side)//(nks-i))
        for _ in range(k): side.pop(0)()

def pub(insts):
    l1=E.newlab(); l2=E.newlab()
    I(f"s_cmp_eq_u32 s{sFAST}, 0"); I(f"s_cbranch_scc1 {l1}"); tb=E.mark(); E.cond+=1
    for x in insts: I(x)
    I(f"s_branch {l2}"); tb2=E.mark(); E.join(l1,tb)
    for x in insts: I(x+" sc1")
    E.cond-=1; E.join(l2,tb2)
def touch(p,nbytes,dst,sr):
    share=nbytes//32
    I(f"s_and_b32 s{sT0}, s{sWG}, 31"); I(f"s_mul_i32 s{sT0}, s{sT0}, {share}")
    I(f"v_lshlrev_b32 v{vT0}, 7, v0"); I(f"v_cmp_gt_u32 vcc, {share}, v{vT0}"); I(f"v_mov_b32 v{vT1}, 0x7ffffff0"); I(f"v_cndmask_b32 v{vT0}, v{vT1}, v{vT0}, vcc")
    I(f"buffer_load_dword v{dst}, v{vT0}, {srd(sr)}, s{sT0} offen","pf")
def reset_local(sc,e35=True,R=T+8,e1=True):
    for i in range(4): I(f"v_mov_b32 v{R+i}, -1")
    if e1:
        for j in range(2): I(f"buffer_store_dwordx4 {v(R,4)}, v{vL16}, {srd(sWS)}, s{sE1} offen offset:{1024*j}{sc}","rst")
    if e35:
        I(f"s_lshr_b32 s{sT0}, s{sWv}, 2"); I(f"s_mul_i32 s{sT0}, s{sT0}, {E5-E3-4096}"); I(f"s_add_u32 s{sT0}, s{sT0}, s{sX4}"); I(f"s_add_u32 s{sT0}, s{sT0}, {E3}")
        I(f"buffer_store_dwordx4 {v(R,4)}, v{vL16}, {srd(sWS)}, s{sT0} offen{sc}","rst")
def w7(fn):
    lab=E.newlab(); I(f"s_cmp_lg_u32 s{sWv}, 7"); I(f"s_cbranch_scc1 {lab}"); tb=E.mark(); E.cond+=1
    fn()
    E.cond-=1; E.join(lab,tb)
def flag_put(bits):
    I(f"s_or_b32 s{sT0}, s{sXCC}, {bits}"); I(f"v_mov_b32 v{vT0}, s{sEP}"); I(f"v_mov_b32 v{vT1}, s{sT0}"); I(f"v_mov_b32 v{vT2}, 0")
    I(f"s_lshl_b32 s{sT0}, s{sWG}, 7"); I(f"s_add_u32 s{sT0}, s{sT0}, {FL}"); I("s_mov_b64 exec, 1")
    I(f"buffer_store_dwordx2 {v(vT0,2)}, v{vT2}, {srd(sWS)}, s{sT0} offen sc1"); I("s_mov_b64 exec, -1")
def flag_wait(bits,allwg,R=RB):
    n=4 if allwg else 1
    if allwg: I(f"v_lshlrev_b32 v{vT1}, 7, v{vLANE}"); I(f"s_mov_b32 s{sT0}, {FL}")
    else: I(f"v_and_b32 v{vT1}, 3, v{vLANE}"); I(f"v_lshlrev_b32 v{vT1}, 7, v{vT1}"); I(f"s_lshl_b32 s{sT0}, s{sTile}, 9"); I(f"s_add_u32 s{sT0}, s{sT0}, {FL}")
    def loads():
        for k in range(n):
            I(f"s_add_u32 s{sT1}, s{sT0}, {k*8192}"); I(f"buffer_load_dwordx2 {v(R+2*k,2)}, v{vT1}, {srd(sWS)}, s{sT1} offen sc1")
    def chk():
        I(f"v_mov_b32 v{vT0}, 0")
        for k in range(n):
            I(f"v_xor_b32 v{vT2}, s{sEP}, v{R+2*k}"); I(f"v_or_b32 v{vT0}, v{vT0}, v{vT2}")
            I(f"v_not_b32 v{vT2}, v{R+2*k+1}"); I(f"v_and_b32 v{vT2}, {bits}, v{vT2}"); I(f"v_or_b32 v{vT0}, v{vT0}, v{vT2}")
        I(f"v_cmp_ne_u32 vcc, 0, v{vT0}")
    poll(loads,[],chk)
def exch_pub():
    pack16(ACC,T)
    pub([f"buffer_store_dwordx4 {v(T,4)}, v{vL16}, {srd(sWS)}, s{sE1} offen", f"buffer_store_dwordx4 {v(T+4,4)}, v{vL16}, {srd(sWS)}, s{sE1} offen offset:1024"])
def exch_get(final,R,bg=()):
    I(f"s_xor_b32 s{sT1}, s{sE1}, 0x4000"); I(f"s_xor_b32 s{sT2}, s{sE1}, 0x8000"); I(f"s_xor_b32 s{sT3}, s{sE1}, 0xc000")
    off=vL16
    if final:
        I(f"v_bfe_u32 v{vT1}, v{vLANE}, 3, 2"); I(f"v_cmp_eq_u32 vcc, s{sS}, v{vT1}"); I(f"v_mov_b32 v{vT1}, 0x7ffffff0")
        I(f"v_cndmask_b32 v{vT1}, v{vT1}, v{vL16}, vcc"); off=vT1
    for i in range(8): I(f"v_pk_fma_f32 {v(X+2*i,2)}, {v(ACC+2*i,2)}, 0.5, {v(X+2*i,2)} op_sel_hi:[1,0,1]")
    I(f"v_mov_b32 v{vT2}, 0x3f00"); I(f"v_mov_b32 v{vT3}, 0.5")
    def loads():
        for k,sr in enumerate((sT1,sT2,sT3)):
            for j in range(2): I(f"buffer_load_dwordx4 {v(R+8*k+4*j,4)}, v{off}, {srd(sWS)}, s{sr} offen offset:{1024*j} sc1")
    poll(loads,list(range(R,R+24)))
    E.bg+=bg; E.bgk=60; E.bgc=60
    for k in range(3):
        for i in range(8):
            I(f"v_dot2c_f32_bf16 v{X+2*i}, v{R+8*k+i}, v{vT2}"); I(f"v_dot2c_f32_bf16 v{X+2*i+1}, v{R+8*k+i}, v{vT3}")
def hid_out():
    setC(NLOG2E); silu(ACC,16,T); pack16(ACC,T)
    I(f"ds_write_b128 v{vACTW}, {v(T,4)} offset:16384"); I(f"ds_write_b128 v{vACTW}, {v(T+4,4)} offset:17408")
def addX():
    for i in range(8): I(f"v_pk_add_f32 {v(X+2*i,2)}, {v(X+2*i,2)}, {v(ACC+2*i,2)}")
def mksrd(sr,p,n):
    I(f"s_mov_b32 s{sr}, s{p}"); I(f"s_mov_b32 s{sr+1}, s{p+1}"); I(f"s_mov_b32 s{sr+2}, {n}"); I(f"s_mov_b32 s{sr+3}, 0x20000")

I(f"s_load_dwordx16 s[8:23], s[0:1], 0"); I("s_load_dwordx8 s[24:31], s[0:1], 64"); I("s_load_dwordx2 s[32:33], s[0:1], 96")
I("s_cmp_ge_u32 s2, 256"); I("s_cbranch_scc1 L_end")
stamp()
I(f"s_and_b32 s{sWG}, s2, 7"); I(f"s_lshl_b32 s{sWG}, s{sWG}, 5"); I(f"s_lshr_b32 s{sT0}, s2, 3"); I(f"s_or_b32 s{sWG}, s{sWG}, s{sT0}")
I(f"s_and_b32 s{sS}, s{sWG}, 3"); I(f"s_lshr_b32 s{sTile}, s{sWG}, 2"); I(f"s_lshr_b32 s{sB}, s{sWG}, 7"); I(f"s_and_b32 s{sR}, s{sTile}, 31")
I(f"v_lshrrev_b32 v{vT2}, 6, v0"); I(f"v_and_b32 v{vLANE}, 63, v0")
I(f"v_readfirstlane_b32 s{sWv}, v{vT2}")
I(f"v_lshlrev_b32 v{vL16}, 4, v{vLANE}")
I(f"v_and_b32 v{vT1}, 31, v{vLANE}"); I(f"v_lshlrev_b32 v{vT1}, 9, v{vT1}"); I(f"v_lshl_or_b32 v{vT1}, v{vT2}, 6, v{vT1}")
I(f"v_lshrrev_b32 v{vT3}, 5, v{vLANE}"); I(f"v_lshl_or_b32 v{vXOFF}, v{vT3}, 4, v{vT1}")
I(f"v_and_b32 v{vT1}, 7, v{vLANE}"); I(f"v_bfe_u32 v{vT2}, v{vLANE}, 4, 1"); I(f"v_lshlrev_b32 v{vT3}, 2, v{vT2}")
I(f"v_xor_b32 v{vT1}, v{vT1}, v{vT3}"); I(f"v_lshlrev_b32 v{vC16}, 4, v{vT1}")
I(f"s_lshl_b32 s{sW13}, s{sWv}, 13"); I(f"s_lshl_b32 s{sW10}, s{sWv}, 10")
I(f"s_lshr_b32 s{sT2}, s{sWv}, 1"); I(f"s_and_b32 s{sT3}, s{sWv}, 1")
I(f"s_lshl_b32 s{sKV}, s{sT2}, 7"); I(f"s_lshl_b32 s{sT0}, s{sT3}, 17"); I(f"s_add_u32 s{sBG0}, s{sKV}, s{sT0}"); I(f"s_lshl_b32 s{sT0}, s{sS}, 9"); I(f"s_add_u32 s{sBG0}, s{sBG0}, s{sT0}")
I(f"s_lshl_b32 s{sT0}, s{sT3}, 15"); I(f"s_add_u32 s{sFB}, s{sKV}, s{sT0}"); I(f"s_lshl_b32 s{sT0}, s{sS}, 17"); I(f"s_add_u32 s{sFB}, s{sFB}, s{sT0}")
I(f"s_lshl_b32 s{sQ}, s{sT2}, 9"); I(f"s_mul_i32 s{sT0}, s{sT3}, {64*1536}"); I(f"s_add_u32 s{sQ}, s{sQ}, s{sT0}"); I(f"s_lshl_b32 s{sT0}, s{sS}, 7"); I(f"s_add_u32 s{sQ}, s{sQ}, s{sT0}")
I(f"s_cmp_ge_u32 s{sWv}, 6"); I(f"s_cselect_b32 s{sQ}, 0x70000000, s{sQ}")
I(f"s_mul_i32 s{sT2}, s{sB}, 512000")
I("s_waitcnt lgkmcnt(0)")
def tlb():
    for k,p in enumerate((pW1a,pW1b,pQKV,pWO,pPW1,pPW2,pW2a,pW2b,pOUT,pDBG)):
        I(f"global_load_dword v{200+k}, v{vL16}, s[{p}:{p+1}]")
    I("s_mov_b64 exec, 63"); I(f"v_lshlrev_b32 v{vT0}, 21, v{vLANE}"); I(f"global_load_dword v{212}, v{vT0}, s[{pWS}:{pWS+1}]"); I("s_mov_b64 exec, -1")
if TLB:
    I("s_mov_b64 exec, 1"); w7(tlb); I("s_mov_b64 exec, -1")
I(f"s_add_u32 s{sX}, s{pX}, s{sT2}"); I(f"s_addc_u32 s{sX+1}, s{pX+1}, 0"); I(f"s_mov_b32 s{sX+2}, 512000"); I(f"s_mov_b32 s{sX+3}, 0x20000")
I(f"s_lshl_b32 s{sT3}, s{sR}, 14")
for g in range(2): I(f"buffer_load_dwordx4 {v(ACC+4*g,4)}, v{vXOFF}, {srd(sX)}, s{sT3} offen offset:{32*g}","x")
mksrd(sW,pW1a,524288)
touch(pW1a,524288,250,sW)
mksrd(sWS,pDBG,256)
lab=E.newlab(); I(f"s_or_b32 s{sT3}, s{sWG}, s{sWv}"); I(f"s_cmp_lg_u32 s{sT3}, 0"); I(f"s_cbranch_scc1 {lab}"); tb=E.mark(); E.cond+=1
I("s_memrealtime s[34:35]"); I("s_waitcnt lgkmcnt(0)"); I("s_or_b32 s34, s34, 1"); I(f"v_mov_b32 v{vT2}, s34"); I(f"v_mov_b32 v{vT3}, 0"); I("s_mov_b64 exec, 1")
I(f"buffer_store_dword v{vT2}, v{vT3}, {srd(sWS)}, 0 offen sc1"); I("s_mov_b64 exec, -1")
E.cond-=1; E.join(lab,tb)
I(f"s_mov_b32 s{sO+3}, 0x20000")
mksrd(sX,pW1b,524288) if False else None
sWB=sD+0
mksrd(sWQ,pW1b,524288)
I(f"buffer_load_dword v251, v{vT0}, {srd(sWQ)}, s{sT0} offen","pf")
run(dma_tr(SA,sW,2048,sBG0,0,"fa1"))
mksrd(sWS,pWS,0x10000000)
I(f"s_getreg_b32 s{sXCC}, hwreg(HW_REG_XCC_ID)"); I(f"s_and_b32 s{sXCC}, s{sXCC}, 15"); I(f"s_or_b32 s{sXCC}, s{sXCC}, 16")
I(f"v_lshrrev_b32 v{vT3}, 5, v{vLANE}"); I(f"v_bfe_u32 v{vT1}, v{vLANE}, 2, 2"); I(f"v_lshl_or_b32 v{vT3}, v{vT3}, 2, v{vT1}")
I(f"v_lshlrev_b32 v{vTRA}, 7, v{vT3}")
I(f"v_and_b32 v{vT2}, 3, v{vLANE}"); I(f"v_lshl_or_b32 v{vTRA}, v{vT2}, 3, v{vTRA}")
I(f"v_bfe_u32 v{vT2}, v{vLANE}, 3, 1"); I(f"v_lshl_or_b32 v{vTRA}, v{vT2}, 6, v{vTRA}")
I(f"v_bfe_u32 v{vT2}, v{vLANE}, 4, 1"); I(f"v_lshl_or_b32 v{vTRA}, v{vT2}, 5, v{vTRA}")
I(f"s_and_b32 s{sT0}, s{sWv}, 1"); I(f"s_lshl_b32 s{sT0}, s{sT0}, 6"); I(f"s_lshr_b32 s{sT1}, s{sWv}, 1"); I(f"s_lshl_b32 s{sT1}, s{sT1}, 14")
I(f"v_xor_b32 v{vTRA}, s{sT0}, v{vTRA}"); I(f"v_add_u32 v{vTRA}, s{sT1}, v{vTRA}"); I(f"v_add_u32 v{vTRB}, 0x10000, v{vTRA}")
I(f"v_add_u32 v{vACTR}, {ACT}, v{vL16}"); I(f"s_lshl_b32 s{sT0}, s{sWv}, 11"); I(f"v_add_u32 v{vACTW}, s{sT0}, v{vACTR}")
I(f"s_lshl_b32 s{sE1}, s{sWG}, 14"); I(f"s_add_u32 s{sE1}, s{sE1}, s{sT0}")
I(f"s_lshl_b32 s{sX4}, s{sWG}, 12"); I(f"s_add_u32 s{sX4}, s{sX4}, s{sW10}")
I(f"v_lshlrev_b32 v{vSTR}, 2, v{vLANE}"); I(f"v_add_u32 v{vSTR}, {STATS}, v{vSTR}"); I(f"s_lshl_b32 s{sT0}, s{sWv}, 8"); I(f"v_add_u32 v{vSTW}, s{sT0}, v{vSTR}")
reset_local("",False)
fa2=dma_tr(SB,sW,2048,sBG0,128*2048,"fa2")
I(f"s_lshl_b32 s{sT0}, s{sB}, 2"); I(f"s_add_u32 s{sT0}, s{sT0}, s{sS}"); I(f"s_lshl_b32 s{sT0}, s{sT0}, 18"); I(f"s_add_u32 s{sT0}, s{sT0}, {KV}")
I(f"s_lshl_b32 s{sT1}, s{sWv}, 15"); I(f"s_add_u32 s{sKV}, s{sT0}, s{sT1}")
I(f"s_lshl_b32 s{sT1}, s{sR}, 13"); I(f"s_add_u32 s{sKVo}, s{sT0}, s{sT1}")
def setP(p,n):
    I(f"s_mov_b32 s{sO}, s{p}"); I(f"s_mov_b32 s{sO+1}, s{p+1}"); I(f"s_mov_b32 s{sO+2}, {n}")
PT=RB; vPT=RB+60
lpt=E.newlab(); lb=E.newlab(); lp=E.newlab(); lo=E.newlab()
I(f"v_and_b32 v{vPT}, 31, v{vLANE}"); I(f"v_lshlrev_b32 v{vPT}, 1, v{vPT}")
I(f"s_lshl_b32 s{sT1}, s{sWG}, 1"); I(f"s_and_b32 s{sT3}, s{sWv}, 1"); I(f"s_add_u32 s{sT1}, s{sT1}, s{sT3}")
I(f"s_cmp_ge_u32 s{sWv}, 4"); I(f"s_cselect_b32 s{sT1}, s{sWG}, s{sT1}")
I(f"s_lshl_b32 s34, s{sT1}, 10"); I(f"s_and_b32 s{sT3}, s{sT1}, 15"); I(f"s_lshr_b32 s35, s{sT1}, 4")
I(f"s_movk_i32 s54, 512"); I(f"s_and_b32 s53, s35, 7"); I(f"s_lshl_b32 s53, s53, 6")
I(f"s_cmp_ge_u32 s{sWG}, 128"); I(f"s_cselect_b32 s{sO}, s{pPW2}, s{pWO}"); I(f"s_cselect_b32 s{sO+1}, s{pPW2+1}, s{pWO+1}")
I(f"s_lshr_b32 s35, s35, 3"); I(f"s_lshl_b32 s35, s35, 17")
I(f"s_cmp_ge_u32 s{sWv}, 4"); I(f"s_cselect_b32 s{sO}, s{sO}, s{pW2b}"); I(f"s_cselect_b32 s{sO+1}, s{sO+1}, s{pW2b+1}"); I(f"s_cselect_b32 s35, 0, s35")
I(f"s_cselect_b32 s{sT0}, {WTO}, {WTB}" if False else f"s_cselect_b32 s{sT0}, {WTO-WTB}, 0"); I(f"s_add_u32 s53, s53, s35"); I(f"s_add_u32 s34, s34, s{sT0}"); I(f"s_add_u32 s34, s34, {WTB}")
I(f"s_lshr_b32 s{sT0}, 0x2c, s{sWv}"); I(f"s_and_b32 s{sT0}, s{sT0}, 1"); I(f"s_cselect_b32 s34, s34, 0x70000000"); I(f"s_lshl_b32 s{sO+2}, s{sT0}, 19")
I(f"s_mul_i32 s{sT3}, s{sT3}, s54"); I(f"s_lshl_b32 s{sT3}, s{sT3}, 4"); I(f"s_add_u32 s53, s53, s{sT3}")
I(f"v_lshrrev_b32 v{vT1}, 5, v{vLANE}"); I(f"s_lshl_b32 s55, s54, 2"); I(f"v_mad_u32_u24 v{vPT}, v{vT1}, s55, v{vPT}")
def ptl(e):
    def f():
        I(f"buffer_load_ushort v{PT+16+e}, v{vPT}, {srd(sO)}, s53 offen","pt")
        if e<7: I(f"s_add_u32 s53, s53, s54")
        if e==3: I(f"s_add_u32 s53, s53, s55")
    return f
RR=RB+56
def rs1(): reset_local("",e1=False,R=RR)
def rs2():
    I(f"s_lshl_b32 s{sT0}, s{sWG}, 12"); I(f"s_add_u32 s{sT0}, s{sT0}, {E4-8192}"); I(f"s_cmp_lt_u32 s{sWv}, 4"); I(f"s_cselect_b32 s{sT0}, s{sKVo}, s{sT0}")
    I(f"s_lshl_b32 s{sT1}, s{sWv}, 11"); I(f"s_add_u32 s{sT0}, s{sT0}, s{sT1}"); I(f"s_cmp_ge_u32 s{sWv}, 6"); I(f"s_cselect_b32 s{sT0}, 0x70000000, s{sT0}")
    for j in range(2): I(f"buffer_store_dwordx4 {v(RR,4)}, v{vL16}, {srd(sWS)}, s{sT0} offen offset:{1024*j} sc1","rst")
ptls=[ptl(e) for e in range(8)]
side1=[rs1,lambda: touch(pQKV,393216,252,sW)]
if PTE: run(ptls)
else: side1=ptls+side1
def dwjob():
    lend=E.newlab()
    I(f"s_cmp_ge_u32 s{sWG}, 4"); I(f"s_cbranch_scc1 {lend}"); tb=E.mark(); E.cond+=1; I(f"s_cmp_lg_u32 s{sWv}, 6"); I(f"s_cbranch_scc1 {lend}")
    setP(pDW,31*512); I(f"v_lshlrev_b32 v{vT0}, 1, v{vLANE}"); I(f"s_lshl_b32 s{sT0}, s{sWG}, 7"); E.wait_vm0(); I(f"v_mov_b32 v{PT+16+31}, 0")
    for i in range(31):
        I(f"buffer_load_ushort v{PT+16+i}, v{vT0}, {srd(sO)}, s{sT0} offen offset:{(i%8)*512}")
        if i%8==7: I(f"s_add_u32 s{sT0}, s{sT0}, 4096")
    I(f"s_lshl_b32 s{sT0}, s{sWG}, 12"); I(f"s_add_u32 s{sT0}, s{sT0}, {DWP}")
    I(f"v_bfe_u32 v{vT0}, v{vLANE}, 4, 2"); I(f"v_lshlrev_b32 v{vT0}, 7, v{vT0}"); I(f"v_bfe_u32 v{vT1}, v{vLANE}, 2, 1"); I(f"v_lshl_or_b32 v{vT0}, v{vT1}, 6, v{vT0}")
    I(f"v_bfe_u32 v{vT1}, v{vLANE}, 3, 1"); I(f"v_lshl_or_b32 v{vT0}, v{vT1}, 5, v{vT0}"); I(f"v_bfe_u32 v{vT1}, v{vLANE}, 1, 1"); I(f"v_lshl_or_b32 v{vT0}, v{vT1}, 4, v{vT0}")
    I(f"v_and_b32 v{vT1}, 1, v{vLANE}"); I(f"v_lshl_or_b32 v{vT0}, v{vT1}, 11, v{vT0}")
    E.wait_vm0()
    for q in range(16): I(f"v_lshl_or_b32 v{PT+q}, v{PT+17+2*q}, 16, v{PT+16+2*q}")
    for q in range(4): I(f"buffer_store_dwordx4 {v(PT+4*q,4)}, v{vT0}, {srd(sWS)}, s{sT0} offen offset:{512*q} sc1")
    E.cond-=1; E.join(lend,tb); E.nop(2)
E.wait_vm("x")
E.bg+=fa2; E.bgk=70; E.bgc=70
for g in range(2):
    I(f"v_permlane32_swap_b32 v{ACC+4*g}, v{ACC+4*g+2}"); I(f"v_permlane32_swap_b32 v{ACC+4*g+1}, v{ACC+4*g+3}")
for i in range(8):
    I(f"v_lshlrev_b32 v{X+2*i}, 16, v{ACC+i}"); I(f"v_and_b32 v{X+2*i+1}, 0xffff0000, v{ACC+i}")
stamp()
ln_to_act()
E.flush(); E.bgk=140
mksrd(sW,pQKV,393216)
E.wait_vm("fa1"); bar()
stamp()
def get_epoch():
    mksrd(sX,pDBG,256); I(f"v_mov_b32 v{vT1}, 0")
    poll(lambda: I(f"buffer_load_dword v{vT2}, v{vT1}, {srd(sX)}, 0 offen sc1"),[],lambda: I(f"v_cmp_eq_u32 vcc, 0, v{vT2}"))
    I(f"v_readfirstlane_b32 s{sEP}, v{vT2}")
gemm(0,8,"tr",vTRA,0,True,side=side1)
if DBG&8: stamp()
w7(get_epoch)
E.wait_vm("fa2"); bar(False)
w7(lambda: flag_put(0))
if DBG&8: stamp()
gemm(8,8,"tr",vTRB,0,False,side=dma_tr(SA,sWQ,512,sFB,0,"fb1"))
bar(False)
if DBG&8: stamp()
E.bg+=dma_tr(SB,sWQ,512,sFB,128*512,"fb2"); E.bgk=80; E.bgc=80
hid_out()
E.flush()
if DBG&8: stamp()
E.wait_vm("pt")
for q in range(4): I(f"v_lshl_or_b32 v{PT+q}, v{PT+17+2*q}, 16, v{PT+16+2*q}")
I(f"buffer_store_dwordx4 {v(PT,4)}, v{vL16}, {srd(sWS)}, s34 offen sc1","pts")
dwjob(); rs2()
mksrd(sX,pW2a,524288); mksrd(sWQ,pPW1,262144)
I(f"s_mul_i32 s{sT2}, s{sB}, 512000")
I(f"s_add_u32 s{sO}, s{pOUT}, s{sT2}"); I(f"s_addc_u32 s{sO+1}, s{pOUT+1}, 0"); I(f"s_mov_b32 s{sO+2}, 512000")
def w6wait(tag):
    idx=[i for i,(g,c) in enumerate(E.vm) if g==tag]; n=sum(1 for g,c in E.vm[idx[-1]+1:] if not c)
    l6=E.newlab(); I(f"s_waitcnt vmcnt({n+3})"); I(f"s_cmp_eq_u32 s{sWv}, 6"); I(f"s_cbranch_scc1 {l6}"); E.wait_vm(tag); E.label(l6)
E.wait_vm("fb1"); bar()
stamp()
gemm(0,8,"tr",vTRA,16384,True)
def clus():
    flag_wait(16,False)
    I(f"v_and_b32 v{vT2}, 31, v{RB+1}"); I(f"v_cmp_ne_u32 vcc, s{sXCC}, v{vT2}"); I("s_cmp_eq_u64 vcc, 0"); I(f"s_cselect_b32 s{sT0}, 1, 0")
    I(f"v_mov_b32 v{vT2}, s{sT0}"); I(f"v_mov_b32 v{vT1}, {ACT}"); I(f"ds_write_b32 v{vT1}, v{vT2}"); I("s_waitcnt lgkmcnt(0)")
w7(clus)
E.wait_vm("fb2"); bar(False)
I(f"v_mov_b32 v{vT1}, {ACT}"); I(f"ds_read_b32 v{vT3}, v{vT1}")
q1=dma_tr(SA,sW,1536,sQ,0,"q1"); la=E.newlab(); lb_=E.newlab()
I(f"s_cmp_ge_u32 s{sWv}, 6"); I(f"s_cbranch_scc1 {la}"); tb=E.mark(); E.cond+=1
gemm(8,8,"tr",vTRB,16384,False,side=q1); I("s_waitcnt vmcnt(8)"); I(f"s_branch {lb_}"); tb2=E.mark(); E.join(la,tb)
gemm(8,8,"tr",vTRB,16384,False); I("s_waitcnt vmcnt(0)"); E.cond-=1; E.join(lb_,tb2)
stamp()
I(f"v_readfirstlane_b32 s{sFAST}, v{vT3}"); I(f"s_cmp_lg_u32 s{sFAST}, 0")
lf=E.newlab(); I(f"s_cbranch_scc1 {lf}"); tb=E.mark(); E.cond+=1
reset_local(" sc1"); E.wait_vm0(); I("s_barrier")
w7(lambda: (I(f"s_or_b32 s{sXCC}, s{sXCC}, 32"), flag_put(0), flag_wait(32,False)))
I("s_barrier")
E.cond-=1; E.join(lf,tb)
exch_pub()
bar(False)
w7(lambda: flag_put(64))
q2=dma_tr(SB,sW,1536,sQ,128*1536,"q2")
exch_get(False,RB,q2)
stamp()
dump(X)
def wt_touch():
    I(f"s_and_b32 s{sT0}, s{sWG}, 31"); I(f"s_mul_i32 s{sT0}, s{sT0}, 49152"); I(f"s_add_u32 s{sT0}, s{sT0}, s{sW13}"); I(f"s_add_u32 s{sT0}, s{sT0}, {WTA}")
    I(f"s_cmp_ge_u32 s{sWv}, 6"); I(f"s_cselect_b32 s{sT0}, 0x70000000, s{sT0}"); E.flush()
    I(f"v_lshlrev_b32 v{vT3}, 7, v{vLANE}"); I(f"buffer_load_dword v250, v{vT3}, {srd(sWS)}, s{sT0} offen sc1","pf")
def t2():
    E.flush()
    I(f"s_and_b32 s{sT0}, s{sWG}, 31"); I(f"s_lshl_b32 s{sT0}, s{sT0}, 3"); I(f"s_add_u32 s{sT0}, s{sT0}, s{sWv}"); I(f"s_lshl_b32 s{sT1}, s{sT0}, 10"); I(f"s_lshl_b32 s{sT0}, s{sT0}, 11")
    I(f"v_and_b32 v{vT3}, 15, v{vLANE}"); I(f"v_lshlrev_b32 v{vT3}, 7, v{vT3}"); I(f"buffer_load_dword v250, v{vT3}, {srd(sX)}, s{sT0} offen","pf")
    I(f"v_and_b32 v{vT3}, 0x3ff, v{vT3}"); I(f"buffer_load_dword v251, v{vT3}, {srd(sWQ)}, s{sT1} offen","pf")
ln_to_act(t2)
E.wait_vm("q2"); bar()
l_sw=E.newlab(); l_end=E.newlab()
w7(lambda: flag_wait(64,True))
I(f"s_cmp_ge_u32 s{sWv}, 6"); I(f"s_cbranch_scc1 {l_end}"); tb0=E.mark(); E.cond+=1
I(f"s_cmp_ge_u32 s{sWv}, 4"); I(f"s_cbranch_scc1 {l_sw}"); tb1=E.mark()
gemm(0,8,"tr",vTRA,0,True); gemm(8,8,"tr",vTRB,0,False,ring=RB)
I(f"s_branch {l_end}"); tb2=E.mark()
E.join(l_sw,tb1)
gemm(0,8,"tr",vTRA,0,True,swap=True); gemm(8,8,"tr",vTRB,0,False,swap=True,ring=RB)
E.cond-=1; E.join(l_end,tb2)
pack16(ACC,T)
l1=E.newlab(); l2=E.newlab()
I(f"s_cmp_ge_u32 s{sWv}, 2"); I(f"s_cbranch_scc1 {l1}"); tb=E.mark()
I(f"ds_write_b128 v{vACTW}, {v(T,4)} offset:{QF-ACT}"); I(f"ds_write_b128 v{vACTW}, {v(T+4,4)} offset:{QF-ACT+1024}")
I(f"s_branch {l2}"); tb2=E.mark()
E.join(l1,tb); E.cond+=1
I(f"s_cmp_ge_u32 s{sWv}, 6"); I(f"s_cbranch_scc1 {l2}")
I(f"s_lshl_b32 s{sT1}, s{sWv}, 11"); I(f"s_add_u32 s{sT0}, s{sKVo}, s{sT1}"); I(f"s_sub_u32 s{sT0}, s{sT0}, 4096")
I(f"buffer_store_dwordx4 {v(T,4)}, v{vL16}, {srd(sWS)}, s{sT0} offen sc1")
I(f"buffer_store_dwordx4 {v(T+4,4)}, v{vL16}, {srd(sWS)}, s{sT0} offen offset:1024 sc1")
E.cond-=1; E.join(l2,tb)
I(f"v_mov_b32 v{vT0}, {RFL}"); I(f"v_mov_b32 v{vT1}, 0"); I(f"ds_write_b32 v{vT0}, v{vT1}")
I(f"s_movk_i32 s35, 64")
I(f"s_lshl_b32 s{sFB}, s{sWv}, 14")
I(f"s_lshl_b32 s{sT0}, s{sS}, 17"); I(f"s_add_u32 s{sQ}, s{sFB}, s{sT0}")
bar()
stamp()
I(f"s_and_b32 s{sT0}, s{sWG}, 31"); I(f"s_mul_i32 s{sT0}, s{sT0}, 24576"); I(f"s_mul_i32 s{sT1}, s{sWv}, 3072"); I(f"s_add_u32 s{sT0}, s{sT0}, s{sT1}"); I(f"s_add_u32 s{sT0}, s{sT0}, {WTO}")
I(f"v_min_u32 v{vT3}, 23, v{vLANE}"); I(f"v_lshlrev_b32 v{vT3}, 7, v{vT3}"); I(f"buffer_load_dword v{RA}, v{vT3}, {srd(sWS)}, s{sT0} offen sc1","pf")
I(f"s_lshr_b32 s{sT1}, s{sWv}, 2"); I(f"s_and_b32 s{sT2}, s{sWv}, 3"); I(f"s_lshl_b32 s34, s{sT1}, 9"); I(f"s_lshl_b32 s{sT2}, s{sT2}, 16"); I(f"s_add_u32 s34, s34, s{sT2}")
I(f"s_lshl_b32 s{sT2}, s{sS}, 7"); I(f"s_add_u32 s34, s34, s{sT2}"); I(f"s_lshl_b32 s{sT1}, s{sT1}, 5")
I(f"s_mov_b32 s53, s34"); I(f"s_mov_b32 s54, s{sT1}")
I(f"s_lshr_b32 s{sT2}, s{sWv}, 1"); I(f"s_and_b32 s{sT3}, s{sWv}, 1"); I(f"s_lshl_b32 s34, s{sT2}, 7"); I(f"s_lshl_b32 s{sT0}, s{sT3}, 17"); I(f"s_add_u32 s34, s34, s{sT0}"); I(f"s_lshl_b32 s{sT0}, s{sS}, 9"); I(f"s_add_u32 s34, s34, s{sT0}")
lab=E.newlab(); I(f"s_cmp_ge_u32 s{sWv}, 4"); I(f"s_cbranch_scc1 {lab}"); tb=E.mark(); E.cond+=1
I(f"s_lshl_b32 s{sT0}, s{sS}, 12"); I(f"s_add_u32 s{sT0}, s{sT0}, s{sW10}"); I(f"s_add_u32 s{sT0}, s{sT0}, {DWP}")
I(f"s_cmp_ge_u32 s{sWv}, 2"); I(f"s_cselect_b32 s{sT1}, {14336-2048-2048}, 0"); I(f"s_add_u32 s{sT1}, s{sT1}, s{sW10}"); I(f"s_add_u32 m0, s{sT1}, {AUX+2048}")
I(f"buffer_load_dwordx4 v{vL16}, {srd(sWS)}, s{sT0} offen sc1 lds")
E.cond-=1; E.join(lab,tb)
run(dma_lin(SA,sFB,WTO,"wo1"))
KF=RA; VF=RB; SS=RC; QR=ACC; OO=ACC
E.label("L_att"); E.nop(2)
for ks in range(4): I(f"ds_read_b128 {v(QR+4*ks,4)}, v{vACTR} offset:{QF-ACT+ks*1024}")
I(f"v_and_b32 v{vT1}, 31, v{vLANE}"); I(f"v_lshlrev_b32 v{vT1}, 10, v{vT1}"); I(f"v_lshrrev_b32 v{vT2}, 5, v{vLANE}"); I(f"v_lshl_or_b32 v{vT1}, v{vT2}, 9, v{vT1}")
if ROT==1: I(f"s_and_b32 s{sT0}, s{sR}, 7"); I(f"s_lshl_b32 s{sT0}, s{sT0}, 7"); I(f"v_xor_b32 v{vT1}, s{sT0}, v{vT1}")
poll(lambda: I(f"buffer_load_dword v{vT2}, v{vT1}, {srd(sWS)}, s{sKV} offen offset:124 sc1"),[vT2])
I("s_barrier")
stamp()
def kvl(part,base,j):
    I(f"s_add_u32 s{sT0}, s{sKV}, {j*8192+part*4096}")
    for f in range(4): I(f"buffer_load_dwordx4 {v(base+16*j+4*f,4)}, v{vL16}, {srd(sWS)}, s{sT0} offen offset:{1024*f} sc1",f"kv{part}{j}")
if ROT==2:
    I(f"s_and_b32 s{sT0}, s{sR}, 3"); I(f"s_lshl_b32 s{sT0}, s{sT0}, 7"); I(f"v_xor_b32 v{vT1}, s{sT0}, v{vT1}")
    I(f"buffer_load_dword v{vT2}, v{vT1}, {srd(sWS)}, s{sKV} offen sc1","pf")
I("s_setprio 3")
for j in range(4): kvl(0,KF,j)
I("s_setprio 2")
I("s_waitcnt lgkmcnt(0)")
for j in range(4):
    E.wait_vm(f"kv0{j}")
    for ks in range(4):
        I(f"v_mfma_f32_32x32x16_bf16 {v(SS+16*j,16)}, {v(KF+16*j+4*ks,4)}, {v(QR+4*ks,4)}, {'0' if ks==0 else v(SS+16*j,16)}")
    if j>=VD: kvl(1,VF,j-VD)
stamp()
I(f"v_max3_f32 v{vT0}, v{SS}, v{SS+1}, v{SS+2}"); I(f"v_max_f32 v{vT1}, v{SS+3}, v{SS+4}")
for i in range(5,45,4):
    I(f"v_max3_f32 v{vT0}, v{vT0}, v{SS+i}, v{SS+i+1}"); I(f"v_max3_f32 v{vT1}, v{vT1}, v{SS+i+2}, v{SS+i+3}")
lab=E.newlab()
I(f"s_cmp_lg_u32 s{sWv}, 7"); I(f"s_cbranch_scc1 {lab}"); tb=E.mark(); E.cond+=1
for r in range(4,16): I(f"v_mov_b32 v{SS+48+r}, 0xff800000")
E.cond-=1; E.join(lab,tb)
for i in range(45,63,4):
    I(f"v_max3_f32 v{vT0}, v{vT0}, v{SS+i}, v{SS+i+1}")
    if i+3<64: I(f"v_max3_f32 v{vT1}, v{vT1}, v{SS+i+2}, v{SS+i+3}")
I(f"v_max3_f32 v{vT0}, v{vT0}, v{vT1}, v{SS+63}")
I(f"v_mov_b32 v{vT1}, v{vT0}"); setC("0x3e38aa3b"); I(f"v_permlane32_swap_b32 v{vT0}, v{vT1}"); I(f"v_max_f32 v{vT0}, v{vT0}, v{vT1}")
I(f"v_mul_f32 v{vT2}, s{sC}, v{vT0}")
for j in range(4-VD,4): kvl(1,VF,j)
I("s_setprio 0")
SUM=vT0
for j in range(4):
    S=SS+16*j
    if j==WOJ: E.bg+=ld_frags(RA+32,sFB,WTO+8192,"wo",n=8); E.bgc=0; E.bgk=150
    for i in range(0,16,2): I(f"v_pk_fma_f32 {v(S+i,2)}, {v(S+i,2)}, s[{sC}:{sC+1}], {v(vT2,2)} op_sel_hi:[1,1,0] neg_lo:[0,0,1] neg_hi:[0,0,1]")
    for i in range(16): I(f"v_exp_f32 v{S+i}, v{S+i}")
    for i in range(0,16,2):
        if j==0 and i==0: continue
        if j==0 and i==2: I(f"v_pk_add_f32 {v(SUM,2)}, {v(S,2)}, {v(S+2,2)}")
        else: I(f"v_pk_add_f32 {v(SUM,2)}, {v(SUM,2)}, {v(S+i,2)}")
    for i in range(8): I(f"v_cvt_pk_bf16_f32 v{S+i}, v{S+2*i}, v{S+2*i+1}")
    E.wait_vm(f"kv1{j}")
    for u in range(2):
        for dt in range(2):
            I(f"v_mfma_f32_32x32x16_bf16 {v(OO+16*dt,16)}, {v(VF+16*j+8*dt+4*u,4)}, {v(S+4*u,4)}, {'0' if (j==0 and u==0) else v(OO+16*dt,16)}")
I(f"v_add_f32 v{vT1}, v{vT0}, v{vT1}")
I(f"v_mov_b32 v{vT3}, v{vT1}"); I(f"v_cmp_gt_u32 vcc, 32, v{vLANE}"); I(f"v_permlane32_swap_b32 v{vT1}, v{vT3}"); I(f"v_add_f32 v{vT1}, v{vT1}, v{vT3}")
I(f"v_cndmask_b32 v{vT1}, v{vT1}, v{vT2}, vcc")
I(f"ds_write_b32 v{vSTW}, v{vT1} offset:{MST-STATS}")
I(f"s_add_u32 s{sT0}, s{sW13}, {SB}"); I(f"v_add_u32 v{vT0}, s{sT0}, v{vL16}")
for q in range(8): I(f"ds_write_b128 v{vT0}, {v(OO+4*q,4)} offset:{q*1024}")
E.flush()
bar()
stamp()
lg=E.newlab(); lnan=E.newlab()
I(f"s_cmp_ge_u32 s{sWv}, 4"); I(f"s_cbranch_scc1 {lg}"); tb=E.mark(); E.cond+=1
I(f"v_and_b32 v{vT0}, 31, v{vLANE}"); I(f"v_lshlrev_b32 v{vT0}, 2, v{vT0}"); I(f"v_add_u32 v{vT0}, {MST}, v{vT0}"); I(f"v_add_u32 v{vT1}, 128, v{vT0}")
MM=T; LL=T+8; MG=RB
for i in range(4): I(f"ds_read2st64_b32 {v(MM+2*i,2)}, v{vT0} offset0:{2*i} offset1:{2*i+1}")
for i in range(4): I(f"ds_read2st64_b32 {v(LL+2*i,2)}, v{vT1} offset0:{2*i} offset1:{2*i+1}")
I(f"v_add_u32 v{vT2}, {SB-ACT}, v{vACTW}")
for w in range(8):
    for i in range(2): I(f"ds_read_b128 {v(MG+8*w+4*i,4)}, v{vT2} offset:{w*8192+i*1024}")
I("s_waitcnt lgkmcnt(15)")
I(f"v_max3_f32 v{vT0}, v{MM}, v{MM+1}, v{MM+2}"); I(f"v_max3_f32 v{vT1}, v{MM+3}, v{MM+4}, v{MM+5}"); I(f"v_max3_f32 v{vT0}, v{vT0}, v{MM+6}, v{MM+7}"); I(f"v_max_f32 v{vT0}, v{vT0}, v{vT1}")
for i in range(0,8,2): I(f"v_pk_add_f32 {v(MM+i,2)}, {v(MM+i,2)}, {v(vT0,2)} op_sel_hi:[1,0] neg_lo:[0,1] neg_hi:[0,1]")
for i in range(8): I(f"v_exp_f32 v{MM+i}, v{MM+i}")
I(f"v_pk_mul_f32 {v(vT0,2)}, {v(MM,2)}, {v(LL,2)}")
for i in range(2,8,2): I(f"v_pk_fma_f32 {v(vT0,2)}, {v(MM+i,2)}, {v(LL+i,2)}, {v(vT0,2)}")
I(f"v_add_f32 v{vT0}, v{vT0}, v{vT1}"); I(f"v_rcp_f32 v{vT0}, v{vT0}")
I("s_waitcnt lgkmcnt(0)")
for w in range(8):
    sel="op_sel:[0,1,0] op_sel_hi:[1,1,1]" if w&1 else "op_sel_hi:[1,0,1]"
    for i in range(4):
        if w==0: I(f"v_pk_mul_f32 {v(ACC+2*i,2)}, {v(MG+2*i,2)}, {v(MM,2)} op_sel_hi:[1,0]")
        else: I(f"v_pk_fma_f32 {v(ACC+2*i,2)}, {v(MG+8*w+2*i,2)}, {v(MM+(w&~1),2)}, {v(ACC+2*i,2)} {sel}")
for i in range(4): I(f"v_pk_mul_f32 {v(ACC+2*i,2)}, {v(ACC+2*i,2)}, {v(vT0,2)} op_sel_hi:[1,0]")
for i in range(4): I(f"v_cvt_pk_bf16_f32 v{LL+i}, v{ACC+2*i}, v{ACC+2*i+1}")
I(f"v_pk_add_f32 {v(vT0,2)}, {v(ACC,2)}, {v(ACC+2,2)}"); I(f"v_pk_add_f32 {v(vT2,2)}, {v(ACC+4,2)}, {v(ACC+6,2)}"); I(f"v_pk_add_f32 {v(vT0,2)}, {v(vT0,2)}, {v(vT2,2)}")
I(f"v_cmp_u_f32 vcc, v{vT0}, v{vT1}")
I(f"s_cmp_eq_u32 s35, 0"); I(f"s_cselect_b64 vcc, 0, vcc"); I(f"s_cmp_lg_u64 vcc, 0"); I(f"s_cbranch_scc1 {lnan}"); tbn=E.mark()
I(f"s_add_u32 s{sT0}, s{sX4}, {E3}")
pub([f"buffer_store_dwordx4 {v(LL,4)}, v{vL16}, {srd(sWS)}, s{sT0} offen"])
I(f"s_and_b32 s{sT0}, s{sT0}, 0x3fff"); I(f"v_add_u32 v{vT0}, s{sT0}, v{vACTR}")
I(f"ds_write_b128 v{vT0}, {v(LL,4)}")
I(f"s_branch {lg}")
E.join(lnan,tbn)
I(f"v_mov_b32 v{vT0}, {RFL}"); I(f"v_mov_b32 v{vT1}, s35"); I(f"ds_write_b32 v{vT0}, v{vT1}")
E.cond-=1; E.join(lg,tb); E.nop(2)
bar()
I(f"v_mov_b32 v{vT0}, {RFL}"); I(f"ds_read_b32 v{vT1}, v{vT0}"); I("s_waitcnt lgkmcnt(0)"); I(f"v_readfirstlane_b32 s{sT0}, v{vT1}")
I(f"s_cmp_eq_u32 s{sT0}, s35"); I(f"s_cselect_b32 s{sT0}, 1, 0"); I(f"s_sub_u32 s35, s35, s{sT0}"); I(f"s_cmp_lg_u32 s{sT0}, 0"); I("s_cbranch_scc1 L_att")
lg=E.newlab()
I(f"s_cmp_lt_u32 s{sWv}, 4"); I(f"s_cbranch_scc1 {lg}"); tb=E.mark(); E.cond+=1
I(f"s_add_u32 s{sT0}, s{sX4}, {E3-4096}")
I(f"s_xor_b32 s{sT1}, s{sT0}, 0x1000"); I(f"s_xor_b32 s{sT2}, s{sT0}, 0x2000"); I(f"s_xor_b32 s{sT3}, s{sT0}, 0x3000")
def e3loads():
    for k,sr in enumerate((sT1,sT2,sT3)): I(f"buffer_load_dwordx4 {v(RB+4*k,4)}, v{vL16}, {srd(sWS)}, s{sr} offen sc1")
poll(e3loads,list(range(RB,RB+12)))
for k,sr in enumerate((sT1,sT2,sT3)):
    I(f"s_and_b32 s{sr}, s{sr}, 0x3fff"); I(f"v_add_u32 v{vT0}, s{sr}, v{vACTR}"); I(f"ds_write_b128 v{vT0}, {v(RB+4*k,4)}")
E.cond-=1; E.join(lg,tb)
bar()
stamp()
p1=dma_tr(SA,sWQ,1024,53,0,"p1"); I(f"v_xor_b32 v{vDMA}, s54, v{vDMA}")
I(f"v_add_u32 v{vT3}, s{sW13}, v{vL16}")
gemm(0,8,"lds",vT3,0,True,ring=RC,depth=5)
E.wait_vm("wo"); bar(False)
gemm(8,8,"reg",RA,0,False,ring=RA,depth=5,side=p1)
E.flush()
ga1=dma_tr(SB,sX,2048,34,0,"ga1"); ga2=dma_tr(SA,sX,2048,34,128*2048,"ga2",setup=False)
vTRP=vC16
I(f"s_and_b32 s{sT3}, s{sWv}, 1"); I(f"v_and_b32 v{vTRP}, 0x3ff, v{vTRA}"); I(f"s_lshl_b32 s{sT3}, s{sT3}, 6"); I(f"v_xor_b32 v{vTRP}, s{sT3}, v{vTRP}")
I(f"v_bfe_u32 v{vT2}, v{vLANE}, 4, 1"); I(f"v_lshl_or_b32 v{vTRP}, v{vT2}, 15, v{vTRP}"); I(f"s_and_b32 s{sT0}, s{sWv}, 3"); I(f"s_lshl_b32 s{sT0}, s{sT0}, 5"); I(f"v_xor_b32 v{vTRP}, s{sT0}, v{vTRP}")
E.bg+=ld_frags(RB,sFB,WTO+131072,"c")+ga1+ld_frags(RA,sQ,WTB,"gb"); E.bgk=100
addX()
dump(X)
l1=E.newlab(); l2=E.newlab()
I(f"s_cmp_eq_u32 s{sFAST}, 0"); I(f"s_cbranch_scc1 {l1}"); tb=E.mark(); E.cond+=1
reset_local("",False,ACC); I(f"s_branch {l2}"); tb2=E.mark(); E.join(l1,tb); reset_local(" sc1",False,ACC); E.cond-=1; E.join(l2,tb2)
ln_to_act()
E.wait_vm("p1"); bar()
I(f"v_and_b32 v{vT0}, 0x1ff, v{vL16}"); I(f"v_add_u32 v{vT0}, {AUX+2048}, v{vT0}")
for q in range(8): I(f"ds_read_b128 {v(WE+4*q,4)}, v{vT0} offset:{512*q+(14336-4096 if q>=4 else 0)}")
NB=12; both=E.bg[:NB]; E.bg=E.bg[NB:]
stamp()
lg=E.newlab(); le=E.newlab()
I(f"v_and_b32 v{vT3}, 31, v{vLANE}")
I(f"s_cmp_ge_u32 s{sWv}, 4"); I(f"s_cbranch_scc1 {lg}"); tb=E.mark(); E.cond+=1
gemm(0,16,"tr",vTRP,0,True,ring=RC,depth=3,side=both)
setC(NLOG2E)
for i in range(0,8,2): I(f"v_pk_mul_f32 {v(T+i,2)}, {v(ACC+8+i,2)}, s[{sC}:{sC+1}]")
for i in range(8): I(f"v_exp_f32 v{T+i}, v{T+i}")
for i in range(0,8,2): I(f"v_pk_add_f32 {v(T+i,2)}, {v(T+i,2)}, 1.0 op_sel_hi:[1,0]")
for i in range(8): I(f"v_rcp_f32 v{T+i}, v{T+i}")
I(f"s_lshl_b32 s{sT0}, s{sR}, 5"); I(f"v_add_u32 v{vT0}, s{sT0}, v{vT3}"); I(f"v_cmp_gt_u32 vcc, 1000, v{vT0}")
for i in range(0,8,2): I(f"v_pk_mul_f32 {v(T+i,2)}, {v(ACC+i,2)}, {v(T+i,2)}")
for i in range(4): I(f"v_cvt_pk_bf16_f32 v{T+i}, v{T+2*i}, v{T+2*i+1}")
for i in range(4): I(f"v_cndmask_b32 v{T+i}, 0, v{T+i}, vcc")
I(f"s_add_u32 s{sT0}, s{sX4}, {E4}")
I(f"buffer_store_dwordx4 {v(T,4)}, v{vL16}, {srd(sWS)}, s{sT0} offen sc1")
I(f"v_add_u32 v{vT3}, 16, v{vT3}")
I(f"s_branch {le}"); tb2=E.mark()
E.join(lg,tb)
run(both)
I(f"s_add_u32 s{sT1}, s{sX4}, {E4-4096-0x4000}")
I(f"v_xor_b32 v{vT1}, 0x100, v{vL16}"); I(f"v_bfe_u32 v{vT2}, v{vLANE}, 4, 1"); I(f"v_lshl_or_b32 v{vT1}, v{vT2}, 15, v{vT1}")
I(f"v_lshl_add_u32 v{vT3}, v{vT2}, 5, v{vT3}")
I(f"v_mul_u32_u24 v{vT2}, 31, v{vT2}"); I(f"v_cmp_eq_u32 vcc, s{sR}, v{vT2}"); I(f"v_mov_b32 v{vT2}, 0x7ffffff0"); I(f"v_cndmask_b32 v{vT1}, v{vT1}, v{vT2}, vcc")
poll(lambda: I(f"buffer_load_dwordx4 {v(T,4)}, v{vT1}, {srd(sWS)}, s{sT1} offen sc1"),list(range(T,T+4)))
E.cond-=1; E.join(le,tb2)
I(f"v_mul_u32_u24 v{vT3}, 144, v{vT3}"); I(f"v_lshrrev_b32 v{vT0}, 5, v{vLANE}"); I(f"v_lshl_add_u32 v{vT3}, v{vT0}, 4, v{vT3}")
I(f"s_and_b32 s{sT0}, s{sWv}, 3"); I(f"s_lshl_b32 s{sT0}, s{sT0}, 5"); I(f"s_add_u32 s{sT0}, s{sT0}, {HIM}"); I(f"v_add_u32 v{vT3}, s{sT0}, v{vT3}")
I(f"ds_write_b128 v{vT3}, {v(T,4)}")
I(f"v_mul_u32_u24 v{vT0}, 144, v{vT0}"); I(f"v_and_b32 v{vT1}, 31, v{vLANE}"); I(f"v_lshl_add_u32 v{vT0}, v{vT1}, 2, v{vT0}")
I(f"s_mul_i32 s{sT0}, s{sWv}, 576"); I(f"s_add_u32 s{sT0}, s{sT0}, {HIM+144}")
AD=ACC+8
for b_ in range(5):
    I(f"s_add_u32 s{sT1}, s{sT0}, {b_*8*144}"); I(f"v_add_u32 v{AD+b_}, s{sT1}, v{vT0}")
for i in range(4): I(f"v_mov_b32 v{ACC+i}, 0")
I(f"s_mov_b32 s{sT2}, 0x05040100"); I(f"s_mov_b32 s{sT3}, 0x07060302")
E.wait_vm0()
bar()
stamp()
nc=max(0,len(E.bg)-16); E.bg=E.bg[:nc]+ga2+E.bg[nc:]
rw=lambda k: RC+2*k if k<16 else ACC+4
lo_=lambda k: T+k if k<16 else ACC+6
for k in range(17): I(f"ds_read2_b32 {v(rw(k),2)}, v{AD+k//4} offset0:{72*(k%4)} offset1:{72*(k%4)+36}")
for k in range(17):
    I(f"s_waitcnt lgkmcnt({min(15,16-k)})")
    I(f"v_perm_b32 v{lo_(k)}, v{rw(k)+1}, v{rw(k)}, s{sT2}"); I(f"v_perm_b32 v{rw(k)+1}, v{rw(k)+1}, v{rw(k)}, s{sT3}")
for m in range(16):
    for u in range(2):
        I(f"v_dot2c_f32_bf16 v{ACC+2*u}, v{lo_(m+u)}, v{WE+m}"); I(f"v_dot2c_f32_bf16 v{ACC+2*u+1}, v{rw(m+u)+1}, v{WE+16+m}")
setC(NLOG2E); silu(ACC,4,T)
I(f"v_cvt_pk_bf16_f32 v{T}, v{ACC}, v{ACC+1}"); I(f"v_cvt_pk_bf16_f32 v{T+1}, v{ACC+2}, v{ACC+3}")
I(f"v_bfe_u32 v{vT0}, v{vLANE}, 2, 3"); I(f"v_lshlrev_b32 v{vT0}, 9, v{vT0}"); I(f"v_lshrrev_b32 v{vT1}, 5, v{vLANE}"); I(f"v_lshl_or_b32 v{vT0}, v{vT1}, 4, v{vT0}")
I(f"v_and_b32 v{vT1}, 3, v{vLANE}"); I(f"v_lshl_or_b32 v{vT0}, v{vT1}, 2, v{vT0}")
I(f"s_lshl_b32 s{sT0}, s{sWG}, 12"); I(f"s_lshl_b32 s{sT1}, s{sWv}, 6"); I(f"s_add_u32 s{sT0}, s{sT0}, s{sT1}"); I(f"s_add_u32 s{sT0}, s{sT0}, {E5}")
pub([f"buffer_store_dword v{T}, v{vT0}, {srd(sWS)}, s{sT0} offen", f"buffer_store_dword v{T+1}, v{vT0}, {srd(sWS)}, s{sT0} offen offset:32"])
I(f"s_lshl_b32 s{sT0}, s{sTile}, 14"); I(f"s_lshl_b32 s{sT1}, s{sWv}, 11"); I(f"s_add_u32 s{sT0}, s{sT0}, s{sT1}"); I(f"s_add_u32 s{sT0}, s{sT0}, {E5}")
def e5loads():
    for i in range(2): I(f"buffer_load_dwordx4 {v(T+4*i,4)}, v{vL16}, {srd(sWS)}, s{sT0} offen offset:{1024*i} sc1")
poll(e5loads,list(range(T,T+8)))
I(f"ds_write_b128 v{vACTW}, {v(T,4)}"); I(f"ds_write_b128 v{vACTW}, {v(T+4,4)} offset:1024")
bar()
stamp()
E.bgk=100
E.flush(max(0,len(E.bg)-32)); E.wait_vm('c')
gemm(0,16,"reg",RB,0,True,ring=RC,depth=7)
addX()
dump(X)
ln_to_act()
print("bg left before ffn2a",len(E.bg)); E.flush(max(0,len(E.bg)-16))
E.wait_vm("ga2"); bar()
stamp()
gemm(0,8,"tr",vTRB,0,True,ring=RC); gemm(8,8,"tr",vTRA,0,False,ring=RB)
hid_out()
E.flush()
bar()
gemm(0,16,"reg",RA,16384,True,ring=RC,depth=7,atag="gb")
stamp()
exch_pub()
exch_get(True,RB)
stamp()
bar(False)
ln_stats(); ln_apply(T); pack16(T,T)
I(f"v_bfe_u32 v{vT1}, v{vLANE}, 3, 2"); I(f"v_cmp_eq_u32 vcc, s{sS}, v{vT1}"); I(f"v_mov_b32 v{vT1}, 0x7ffffff0"); I(f"v_cndmask_b32 v{vT1}, v{vT1}, v{vXOFF}, vcc")
I(f"s_lshl_b32 s{sT3}, s{sR}, 14")
for g in range(2):
    I(f"v_permlane32_swap_b32 v{T+4*g}, v{T+4*g+2}"); I(f"v_permlane32_swap_b32 v{T+4*g+1}, v{T+4*g+3}")
    I(f"buffer_store_dwordx4 {v(T+4*g,4)}, v{vT1}, {srd(sO)}, s{sT3} offen offset:{32*g}")
stamp()
if DBG&1:
    I(f"s_lshl_b32 s{sT0}, s{sWG}, 10"); I(f"s_lshl_b32 s{sT1}, s{sWv}, 7"); I(f"s_add_u32 s{sT0}, s{sT0}, s{sT1}"); I(f"s_add_u32 s{sT0}, s{sT0}, {TS}")
    I(f"v_mov_b32 v{vT1}, 0")
    for i in range(nts[0]):
        I(f"v_mov_b32 v{vT0}, s{sTS+i}"); I(f"buffer_store_dword v{vT0}, v{vT1}, {srd(sWS)}, s{sT0} offen offset:{4*i}")
    assert sTS+nts[0]<=100, nts
E.label("L_end"); I("s_endpgm")

hdr=open("standalone__conformer_family_zipformer__speech.s.ref").read().split("; Override")[0]
out=hdr+"; @launch grid=(256,1,1) block=(512,1,1) lds=163840\n"
out+=f'.amdgcn_target "amdgcn-amd-amdhsa--gfx950"\n.text\n.globl {KN}\n.p2align 8\n.type {KN},@function\n{KN}:\n'
out+="\n".join(E.L)+"\n"
out+=f'''.section .rodata,"a"
.p2align 6
.amdhsa_kernel {KN}
  .amdhsa_next_free_vgpr 256
  .amdhsa_next_free_sgpr 102
  .amdhsa_accum_offset 256
  .amdhsa_group_segment_fixed_size 0
  .amdhsa_kernarg_size 104
  .amdhsa_user_sgpr_count 2
  .amdhsa_user_sgpr_kernarg_segment_ptr 1
  .amdhsa_system_sgpr_workgroup_id_x 1
.end_amdhsa_kernel
'''
open(sys.argv[1],"w").write(out)
print("instrs",len(E.L),"stamps",nts[0],"dumps",ndump[0])
```

```python
import sys
src,dst,ep=sys.argv[1],sys.argv[2],int(sys.argv[3])
L=open(src).read().split('\n')
i1=L.index('L_1:')
early=['    s_sub_u32 s84, s5, 32','    s_cmp_ge_u32 s84, 4','    s_cbranch_scc1 L_dwe','    s_cmp_lg_u32 s60, 6','    s_cbranch_scc1 L_dwe',
 '    s_mov_b32 s88, s20','    s_mov_b32 s89, s21','    s_mov_b32 s90, 15872','    s_mov_b32 s91, 0x20000',
 '    v_lshlrev_b32 v224, 1, v1','    s_lshl_b32 s85, s84, 7','    v_mov_b32 v223, 0']
for i in range(31):
    early.append(f'    buffer_load_ushort v{192+i}, v224, s[88:91], s85 offen offset:{(i%8)*512}')
    if i%8==7: early.append('    s_add_u32 s85, s85, 4096')
early+=['L_dwe:','    s_nop 1']
a=L.index('    s_cmp_ge_u32 s5, 4'); b=L.index('L_10:')
assert L[a+1]=='    s_cbranch_scc1 L_10' and 600<a<b<720
blk=L[a:b]
k0=blk.index('    v_bfe_u32 v12, v1, 4, 2'); k1=blk.index('    v_lshl_or_b32 v12, v13, 11, v12')
late=['    s_cmp_ge_u32 s84, 4','    s_cbranch_scc1 L_10','    s_cmp_lg_u32 s60, 6','    s_cbranch_scc1 L_10','    s_lshl_b32 s61, s84, 12','    s_add_u32 s61, s61, 11010048']+blk[k0:k1+1]
late+=[f'    v_lshl_or_b32 v{192+q}, v{193+2*q}, 16, v{192+2*q}' for q in range(16)]
late+=[f'    buffer_store_dwordx4 v[{192+4*q}:{195+4*q}], v12, s[44:47], s61 offen offset:{512*q} sc1' for q in range(4)]
L=L[:i1+1]+early+L[i1+1:a]+late+L[b:]
if ep:
    j=L.index('    s_or_b32 s3, s5, s60'); assert L[j+1]=='    s_cmp_lg_u32 s3, 0'
    L[j:j+1]=[f'    s_xor_b32 s3, s5, {ep}','    s_or_b32 s3, s3, s60']
open(dst,'w').write('\n'.join(L))
```
